```python
import torch

def _softmax(x, axis=-1):
    return torch.softmax(x, dim=axis)
def _gelu(x):
    return torch.nn.functional.gelu(x, approximate="tanh")
def _silu(x):
    return torch.nn.functional.silu(x)
def _sigmoid(x):
    return torch.sigmoid(x)
def _layernorm(x, axis=-1, eps=1e-5):
    m = x.mean(dim=axis, keepdim=True)
    v = x.var(dim=axis, keepdim=True, unbiased=False)
    return (x - m) / torch.sqrt(v + eps)
def _scatter_add(tgt, idx, src, axis=0):
    return tgt.clone().index_add_(axis, idx, src)
def _segment_sum(src, seg, n):
    out = torch.zeros((n,) + src.shape[1:], dtype=src.dtype)
    return out.index_add_(0, seg, src)
def _pad(x, pw):
    flat = tuple(v for pair in reversed(pw) for v in pair)
    return torch.nn.functional.pad(x, flat)

kernel_name = 'sequential_preLN__compressed_kv_cla__moe_arch_mod__decode'

def setup_inputs():

    _w = (lambda a: (lambda t: t.to(torch.bfloat16) if t.is_floating_point() else t)(torch.as_tensor(a)))
    def _A_setup():
        B, H, Sq, Sk, D, M = 1, 32, 1, 8192, 128, 512
        Dc = 4 * D
        return {
            "x": _w((lambda *s: torch.randn(*s, dtype=torch.bfloat16) * 0.05)(B, Sq, M)),
            "c_kv": _w((lambda *s: torch.randn(*s, dtype=torch.bfloat16) * 0.4)(B, Sk, Dc)),
            "w_q": _w((lambda *s: torch.randn(*s, dtype=torch.bfloat16) * 3.2)(M, H, D) * (M ** -0.5)),
            "w_uk": _w((lambda *s: torch.randn(*s, dtype=torch.bfloat16) * 3.2)(Dc, H, D) * (Dc ** -0.5)),
            "w_uv": _w((lambda *s: torch.randn(*s, dtype=torch.bfloat16) * 0.4)(Dc, H, D) * (Dc ** -0.5)),
            "w_o": _w((lambda *s: torch.randn(*s, dtype=torch.bfloat16) * 0.4)(H, D, M) * ((H * D) ** -0.5)),
        }
    _A_in = _A_setup()

    def _B_setup():
        B, S, D, F, C = 1, 1, 512, 1376, 1
        return {
            "x": _w((lambda *s: torch.randn(*s, dtype=torch.bfloat16) * 0.05)(B, S, D)),
            "w_r": _w((lambda *s: torch.randn(*s, dtype=torch.bfloat16) * 0.1)(D)),
            "w_gate": _w((lambda *s: torch.randn(*s, dtype=torch.bfloat16) * 0.05)(D, F)),
            "w_up": _w((lambda *s: torch.randn(*s, dtype=torch.bfloat16) * 0.05)(D, F)),
            "w_down": _w((lambda *s: torch.randn(*s, dtype=torch.bfloat16) * 0.05)(F, D)),
        }
    _B_in = _B_setup()

    return {
        "A_x": _A_in["x"],
        "A_c_kv": _A_in["c_kv"],
        "A_w_q": _A_in["w_q"],
        "A_w_uk": _A_in["w_uk"],
        "A_w_uv": _A_in["w_uv"],
        "A_w_o": _A_in["w_o"],
        "B_x": _B_in["x"],
        "B_w_r": _B_in["w_r"],
        "B_w_gate": _B_in["w_gate"],
        "B_w_up": _B_in["w_up"],
        "B_w_down": _B_in["w_down"],
    }

def reference(A_x, A_c_kv, A_w_q, A_w_uk, A_w_uv, A_w_o, B_x, B_w_r, B_w_gate, B_w_up, B_w_down):
    def _A_ref(x, c_kv, w_q, w_uk, w_uv, w_o):
        B, Sq, M = x.shape[0], x.shape[1], x.shape[2]
        Sk = c_kv.shape[1]
        H, D = w_q.shape[1], w_q.shape[2]
        q = torch.einsum("bqm,mhd->bhqd", x, w_q)
        k = torch.einsum("bkc,chd->bhkd", c_kv, w_uk)
        v = torch.einsum("bkc,chd->bhkd", c_kv, w_uv)
        scores = torch.einsum("bhqd,bhkd->bhqk", q, k) * (D ** -0.5)
        off = Sk - Sq
        qi = torch.arange(Sq)[:, None]
        kj = torch.arange(Sk)[None, :]
        cmask = kj <= (qi + off)
        scores = torch.where(cmask[None, None], scores, -1e9)
        p = _softmax(scores, axis=-1)
        ctx = torch.einsum("bhqk,bhkd->bhqd", p, v)
        return torch.einsum("bhqd,hdm->bqm", ctx, w_o)

    def _B_ref(x, w_r, w_gate, w_up, w_down):
        B, S, D = x.shape
        C = 1
        r = x @ w_r
        idx = torch.argsort(-r, axis=-1)[:, :C]
        idx_e = (lambda x, n, axis: torch.repeat_interleave(x, n, dim=axis))(idx.reshape(B, C, 1), D, axis=2)
        x_sel = (lambda x, i, axis: torch.take_along_dim(x, i, dim=axis))(x, idx_e, axis=1)
        g = _silu(x_sel @ w_gate)
        u = x_sel @ w_up
        y = (g * u) @ w_down
        r_sel = _sigmoid((lambda x, i, axis: torch.take_along_dim(x, i, dim=axis))(r, idx, axis=1))
        y = y * r_sel.reshape(B, C, 1)
        b_off = (torch.arange(B) * S).reshape(B, 1)
        flat_idx = (idx + b_off).reshape(B * C)
        zero = (x * 0.0).reshape(B * S, D)
        upd = _scatter_add(zero, flat_idx, y.reshape(B * C, D), axis=0)
        return x + upd.reshape(B, S, D)

    x = A_x
    h = x + _A_ref(_layernorm(x, axis=-1), A_c_kv, A_w_q, A_w_uk, A_w_uv, A_w_o)
    h2 = h + _B_ref(_layernorm(h, axis=-1), B_w_r, B_w_gate, B_w_up, B_w_down)
    return h2
```

```python
import re

TRANS = ("v_exp_f32", "v_log_f32", "v_rcp_f32", "v_rsq_f32", "v_sqrt_f32", "v_sin_f32", "v_cos_f32")
_REG = re.compile(r"^(-|\|)?(?:abs\()?([vas])(\d+)\)?\|?$")
_RNG = re.compile(r"^([vas])\[(\d+):(\d+)\]$")


def regs_of(op):
    op = op.strip()
    if op in ("vcc", "exec"):
        return {(op, 0), (op, 1)}
    if op in ("vcc_lo", "exec_lo"):
        return {(op[:-3], 0)}
    if op in ("vcc_hi", "exec_hi"):
        return {(op[:-3], 1)}
    if op == "m0":
        return {("m0", 0)}
    m = _REG.match(op)
    if m:
        return {(m.group(2), int(m.group(3)))}
    m = _RNG.match(op)
    if m:
        return {(m.group(1), i) for i in range(int(m.group(2)), int(m.group(3)) + 1)}
    return set()


def split_ops(s):
    out, depth, cur = [], 0, ""
    for ch in s:
        if ch in "[(":
            depth += 1
        if ch in "])":
            depth -= 1
        if ch == "," and depth == 0:
            out.append(cur.strip())
            cur = ""
        else:
            cur += ch
    if cur.strip():
        out.append(cur.strip())
    return out


class Ins:
    def __init__(self, text):
        self.text = text
        t = text.split(";")[0].strip()
        parts = t.split(None, 1)
        self.mn = parts[0]
        ops = split_ops(parts[1]) if len(parts) > 1 else []
        self.mods = ""
        if ops:
            last = ops[-1].split(None, 1)
            ops[-1] = last[0]
            self.mods = last[1] if len(last) > 1 else ""
        self.ops = ops
        mn = self.mn
        self.mfma = mn.startswith("v_mfma") or mn.startswith("v_smfmac")
        self.valu = mn.startswith("v_") and not self.mfma
        self.ds = mn.startswith("ds_")
        self.vmem = mn.startswith("global_") or mn.startswith("buffer_")
        self.smem = mn.startswith("s_load") or mn.startswith("s_mem") or mn.startswith("s_atomic")
        self.salu = mn.startswith("s_") and not self.smem
        self.dpp = "_dpp" in mn
        self.trans = any(mn.startswith(x) for x in TRANS)
        self.dot = mn.startswith("v_dot")
        self.permlane = mn.startswith("v_permlane")
        self.readlane = mn.startswith("v_readlane") or mn.startswith("v_readfirstlane")
        self.dma = self.vmem and ("_lds_" in mn or " lds" in " " + self.mods)
        R = [regs_of(o) for o in ops]
        self.defs, self.uses = set(), set()
        self.srcC = set()
        self.srcAB = set()
        self.stdata = set()
        self.passes = 0
        if self.mfma:
            self.defs = R[0]
            self.srcAB = R[1] | R[2]
            self.srcC = R[3] if len(R) > 3 else set()
            self.uses = self.srcAB | self.srcC
            self.passes = 8 if "32x32" in mn else 4
        elif self.valu:
            if mn == "v_nop":
                pass
            elif self.permlane:
                self.defs = R[0] | R[1]
                self.uses = R[0] | R[1]
            else:
                self.defs = set(R[0])
                rest = R[1:]
                if "_co_" in mn:
                    self.defs |= R[1]
                    rest = R[2:]
                for r in rest:
                    self.uses |= r
                if mn.startswith(("v_fmac", "v_dot2c", "v_pk_fmac", "v_writelane")) or self.dpp:
                    self.uses |= R[0]
                if self.dot and not mn.startswith("v_dot2c"):
                    self.srcC = R[3]
                    self.srcAB = R[1] | R[2]
                elif self.dot:
                    self.srcC = R[0]
                    self.srcAB = R[1] | R[2]
        elif self.ds:
            if mn.startswith(("ds_read", "ds_bpermute", "ds_permute", "ds_swizzle")):
                self.defs = R[0]
                for r in R[1:]:
                    self.uses |= r
            else:
                for r in R:
                    self.uses |= r
        elif self.vmem:
            if self.dma:
                for r in R:
                    self.uses |= r
                self.uses |= {("m0", 0)}
            elif "_load" in mn:
                self.defs = R[0]
                for r in R[1:]:
                    self.uses |= r
            elif "_store" in mn or "_atomic" in mn:
                for r in R:
                    self.uses |= r
                if "x3" in mn or "x4" in mn:
                    self.stdata = R[1] if mn.startswith("global") else R[0]
        elif self.smem:
            self.defs = R[0] if R else set()
            for r in R[1:]:
                self.uses |= r
        elif self.salu:
            if mn.startswith(("s_cmp", "s_bitcmp", "s_cbranch", "s_branch", "s_waitcnt", "s_nop", "s_barrier",
                              "s_endpgm", "s_sleep", "s_setprio")):
                for r in R:
                    self.uses |= r
            else:
                self.defs = R[0] if R else set()
                for r in R[1:]:
                    self.uses |= r
        self.states = 1
        if mn == "s_nop":
            self.states = int(ops[0], 0) + 1


def _vec(rs):
    return {r for r in rs if r[0] in "va"}


def _sca(rs):
    return {r for r in rs if r[0] in ("s", "vcc", "exec")}


def need(p, c):
    n = 0
    if p.valu:
        vd = _vec(p.defs)
        if vd & c.uses:
            if c.mfma:
                n = max(n, 2)
            if c.dpp or c.permlane:
                n = max(n, 2)
            if c.readlane:
                n = max(n, 1)
            if p.trans:
                n = max(n, 1)
        if p.dot and (vd & (c.uses | c.defs)):
            if c.mn == p.mn and not (vd & c.srcAB):
                pass
            else:
                n = max(n, 3)
        sd = _sca(p.defs)
        if sd & c.uses:
            if c.valu or c.mfma:
                n = max(n, 4 if c.readlane or c.mn.startswith("v_writelane") else 2)
            if c.vmem:
                n = max(n, 5)
    if p.mfma:
        k = {4: 0, 8: 1}[p.passes]
        if c.mfma:
            if p.defs & c.srcAB:
                n = max(n, (8, 12)[k])
            if p.defs & c.srcC and not (p.defs == c.srcC and p.passes == c.passes):
                n = max(n, (6, 10)[k])
            if p.defs & c.defs and not (p.defs & c.srcC):
                n = max(n, (8, 12)[k])
        elif p.defs & (c.uses | c.defs):
            n = max(n, (8, 12)[k])
        if c.valu and (p.srcC & c.defs):
            n = max(n, (3, 7)[k])
    if p.salu and ("m0", 0) in p.defs and c.dma:
        n = max(n, 1)
    if p.stdata & c.defs:
        n = max(n, 2)
    return n


class Asm:
    def __init__(self):
        self.lines = []

    def __call__(self, text):
        for ln in text.strip("\n").split("\n"):
            ln = ln.strip()
            if ln:
                self.lines.append(ln)

    def i(self, text):
        self.lines.append(text)

    def label(self, name):
        self.lines.append(name + ":")

    def finish(self):
        out, hist = [], []
        for ln in self.lines:
            body = ln.split(";")[0].strip()
            if not body or body.endswith(":") or body.startswith("."):
                out.append(ln if body.endswith(":") or body.startswith(".") else "    " + ln)
                continue
            c = Ins(ln)
            dist, req = 0, 0
            for p in reversed(hist):
                r = need(p, c) - dist
                req = max(req, r)
                dist += p.states
                if dist >= 12:
                    break
            if req > 0:
                nop = Ins(f"s_nop {req - 1}")
                hist.append(nop)
                out.append(f"    s_nop {req - 1}")
            hist.append(c)
            out.append("    " + ln)
            if c.mn in ("s_branch", "s_endpgm"):
                hist = []
        return "\n".join(out) + "\n"


def v(a, n=1):
    return f"v{a}" if n == 1 else f"v[{a}:{a + n - 1}]"


def s(a, n=1):
    return f"s{a}" if n == 1 else f"s[{a}:{a + n - 1}]"


def a_(a, n=1):
    return f"a{a}" if n == 1 else f"a[{a}:{a + n - 1}]"
```

```python
import sys
from asmlib import Asm, v, s, a_

NAME = "sequential_preLN__compressed_kv_cla__moe_arch_mod__decode_kernel"

WS_QP = 0x1000
WS_QL = 0x20000
WS_HDR = 0x40000
WS_CP = 0x60000
WS_OP = 0x70000
WS_YP = 0x80000
WS_PART = 0x100000
WS_STAMP = 0x400000

PITCH = 1056
L_QL = 128 * PITCH
L_PB = L_QL + 16 * PITCH
L_M = L_PB + 4096
L_TOTAL = L_M + 256
L_RED = L_PB
L_RED2 = L_QL
L_H = 0
L_ST = 2048

pX, pCKV, pWQ, pWUK, pWUV, pWO, pWR, pWG, pWU, pWD, pOUT, pDBG, pWS = 4, 6, 8, 10, 12, 14, 18, 20, 22, 24, 26, 28, 30
sX, sJ, sW, sH, sJJ = 32, 33, 34, 35, 36
sA, sB, sC, sD = 38, 39, 48, 49
sT = 40
sE, sCNT = 45, 47
sPC = 50
sST = 64
POLL_LIMIT = 200000

DPPALL = "row_mask:0xf bank_mask:0xf"


def build(stamps=False, opt=None):
    opt = opt or {}
    A = Asm()
    nst = [0]

    def stamp(k):
        if stamps:
            A.i(f"s_memrealtime {s(sST + 2 * k, 2)}")

    def setexec(lo, hi):
        A.i(f"s_mov_b32 exec_lo, {lo:#x}")
        A.i(f"s_mov_b32 exec_hi, {hi:#x}")

    def execall():
        A.i("s_mov_b64 exec, -1")

    vL, vC16, vG, vFF = 1, 2, 3, 4
    vM = 8
    vRW, vRR = 5, 6
    vT = 12

    def row_allreduce(op, regs):
        for r in (8, 4, 2, 1):
            for x in regs:
                A.i(f"{op}_dpp {v(x)}, {v(x)}, {v(x)} row_ror:{r} {DPPALL}")

    def cross_rows(op, regs, tmp):
        for sw in ("v_permlane16_swap_b32", "v_permlane32_swap_b32"):
            for k, x in enumerate(regs):
                A.i(f"v_mov_b32 {v(tmp + k)}, {v(x)}")
            for k, x in enumerate(regs):
                A.i(f"{sw} {v(x)}, {v(tmp + k)}")
            for k, x in enumerate(regs):
                A.i(f"{op} {v(x)}, {v(x)}, {v(tmp + k)}")

    def tag4(dst, src):
        for r in range(4):
            A.i(f"v_bfi_b32 {v(dst + r)}, {v(vFF)}, {s(sT + r)}, {v(src + r)}")

    def poll(name, loads, regs, acc, full_tag_reg=None, sleep=0):
        A.i(f"s_mov_b32 {s(sCNT)}, {POLL_LIMIT}")
        A.label(f"L_poll_{name}")
        if sleep:
            A.i(f"s_sleep {sleep}")
        loads()
        A.i("s_waitcnt vmcnt(0)")
        if full_tag_reg is not None:
            A.i(f"v_cmp_ne_u32 vcc, {s(sT)}, {v(full_tag_reg)}")
        else:
            first = True
            for g in regs:
                for r in range(4):
                    if first:
                        A.i(f"v_xor_b32 {v(acc)}, {s(sT + r)}, {v(g + r)}")
                        first = False
                    else:
                        A.i(f"v_bitop3_b32 {v(acc)}, {v(acc)}, {v(g + r)}, {s(sT + r)} bitop3:0xf6")
            A.i(f"v_and_b32 {v(acc)}, {v(acc)}, {v(vFF)}")
            A.i(f"v_cmp_ne_u32 vcc, 0, {v(acc)}")
        A.i(f"s_sub_u32 {s(sCNT)}, {s(sCNT)}, 1")
        A.i(f"s_cbranch_scc1 L_pollx_{name}")
        A.i(f"s_cbranch_vccnz L_poll_{name}")
        A.label(f"L_pollx_{name}")

    def sel_mfma(D, W, dppmod, B, Atmp, first):
        for q in range(4):
            if dppmod:
                A.i(f"v_and_b32_dpp {v(Atmp + q)}, {v(W)}, {v(vM + q)} {dppmod} {DPPALL}")
            else:
                A.i(f"v_and_b32 {v(Atmp + q)}, {v(W)}, {v(vM + q)}")
        return f"v_mfma_f32_16x16x32_bf16 {v(D, 4)}, {v(Atmp, 4)}, {B}, {'0' if first else v(D, 4)}"

    def sel_chain(D, items, Atmp, waits=None):
        pend = None
        for k, (W, mod, B) in enumerate(items):
            m = sel_mfma(D, W, mod, B, Atmp + 4 * (k & 1), k == 0)
            if pend:
                if waits and waits[k - 1] is not None:
                    A.i(waits[k - 1])
                A.i(pend)
            pend = m
        if waits and waits[-1] is not None:
            A.i(waits[-1])
        A.i(pend)

    def finish_stamps():
        if not stamps:
            return
        A.i("s_waitcnt lgkmcnt(0)")
        execall()
        A.i(f"v_mov_b32 {v(20)}, 0")
        for k in range(16):
            A.i(f"v_writelane_b32 {v(20)}, {s(sST + 2 * k)}, {k}")
        A.i(f"s_lshl_b32 {s(sA)}, s2, 2")
        A.i(f"s_add_u32 {s(sA)}, {s(sA)}, {s(sW)}")
        A.i(f"s_lshl_b32 {s(sA)}, {s(sA)}, 6")
        A.i(f"s_add_u32 {s(sA)}, {s(sA)}, {WS_STAMP}")
        A.i(f"v_lshl_add_u32 {v(21)}, {v(vL)}, 2, {s(sA)}")
        setexec(0xFFFF, 0)
        A.i(f"global_store_dword {v(21)}, {v(20)}, {s(pWS, 2)}")

    A.label(NAME)
    A(f"""
    s_cmp_ge_u32 s2, 256
    s_cbranch_scc1 L_end
    s_load_dwordx16 s[4:19], s[0:1], 0
    s_load_dwordx8 s[20:27], s[0:1], 64
    s_load_dwordx4 s[28:31], s[0:1], 96
    """)
    if stamps:
        for k in range(16):
            A.i(f"s_mov_b32 {s(sST + 2 * k)}, 0")
    stamp(0)
    vXA, vX4, vWQ = 20, 24, 28
    vRole = 44
    vA0, vA1 = 76, 77
    A(f"""
    s_getpc_b64 {s(sPC, 2)}
    L_pc:
    v_lshrrev_b32 {v(vT)}, 6, v0
    v_and_b32 {v(vL)}, 63, v0
    s_and_b32 {s(sX)}, s2, 7
    s_lshr_b32 {s(sJ)}, s2, 3
    v_readfirstlane_b32 {s(sW)}, {v(vT)}
    s_lshr_b32 {s(sJJ)}, {s(sJ)}, 1
    s_lshr_b32 {s(sA)}, {s(sJ)}, 3
    s_lshl2_add_u32 {s(sH)}, {s(sX)}, {s(sA)}
    s_lshl_b32 {s(sA)}, {s(sJ)}, 10
    v_lshl_add_u32 {v(vT)}, v0, 2, {s(sA)}
    v_min_u32 {v(vT)}, L_code_end - L_pc - 4, {v(vT)}
    global_load_dword {v(vT + 1)}, {v(vT)}, {s(sPC, 2)}
    s_and_b32 {s(sA)}, {s(sJJ)}, 3
    s_lshl2_add_u32 {s(sA)}, {s(sA)}, {s(sW)}
    s_lshl_b32 {s(sA)}, {s(sA)}, 5
    v_lshrrev_b32 {v(vT + 2)}, 3, {v(vL)}
    v_and_b32 {v(vT + 3)}, 7, {v(vL)}
    v_lshl_add_u32 {v(vT + 4)}, {v(vT + 2)}, 2, {s(sA)}
    s_and_b32 {s(sB)}, {s(sJ)}, 1
    s_lshl1_add_u32 {s(sB)}, {s(sH)}, {s(sB)}
    s_lshl_b32 {s(sB)}, {s(sB)}, 7
    v_lshl_add_u32 {v(vT + 5)}, {v(vT + 3)}, 4, {s(sB)}
    v_lshl_add_u32 {v(vA0)}, {v(vT + 4)}, 13, {v(vT + 5)}
    v_lshlrev_b32 {v(vT + 4)}, 1, {v(vT + 4)}
    v_lshlrev_b32 {v(vRW)}, 4, {v(vL)}
    v_and_b32 {v(vC16)}, 15, {v(vL)}
    v_lshrrev_b32 {v(vG)}, 4, {v(vL)}
    v_mov_b32 {v(vA1)}, 0
    s_waitcnt lgkmcnt(0)
    s_load_dword {s(sE)}, {s(pWS, 2)}, 0
    global_load_dwordx4 {v(vXA, 4)}, {v(vRW)}, {s(pX, 2)}
    global_load_dwordx2 {v(vX4, 2)}, {v(vT + 4)}, {s(pX, 2)}
    """)
    for u in range(4):
        A.i(f"global_load_dwordx4 {v(vWQ + 4 * u, 4)}, {v(vA0)}, {s(pWQ, 2)} nt")
        if u < 3:
            A.i(f"v_add_u32 {v(vA0)}, 0x2000, {v(vA0)}")
    A(f"""
    s_bitcmp1_b32 {s(sJ)}, 0
    s_cbranch_scc1 L_early_A
    v_lshl_add_u32 {v(vT + 4)}, {v(vG)}, 3, {s(sA)}
    s_lshl_b32 {s(sB)}, {s(sH)}, 8
    v_lshl_add_u32 {v(vT + 5)}, {v(vC16)}, 4, {s(sB)}
    v_lshl_add_u32 {v(vA0)}, {v(vT + 4)}, 13, {v(vT + 5)}
    """)
    for u in range(8):
        A.i(f"global_load_dwordx4 {v(vRole + 4 * u, 4)}, {v(vA0)}, {s(pWUK, 2)} nt")
        if u < 7:
            A.i(f"v_add_u32 {v(vA0)}, 0x2000, {v(vA0)}")
    A.i("s_branch L_f1")
    A.label("L_early_A")
    A(f"""
    s_lshl4_add_u32 {s(sB)}, {s(sX)}, {s(sJJ)}
    s_lshl2_add_u32 {s(sB)}, {s(sB)}, {s(sW)}
    s_lshl_b32 {s(sB)}, {s(sB)}, 14
    v_add_u32 {v(vA1)}, {s(sB)}, {v(vRW)}
    s_mul_i32 m0, {s(sW)}, {16 * PITCH}
    """)

    def ckv_rows(i0, i1):
        for i in range(i0, i1):
            A.i(f"global_load_lds_dwordx4 {v(vA1)}, {s(pCKV, 2)} offset:{(i & 3) * 1024} nt")
            if (i & 3) == 3:
                A.i(f"s_add_u32 m0, m0, {PITCH + 3072}")
                A.i(f"v_add_u32 {v(vA1)}, 0x1000, {v(vA1)}")
            else:
                A.i(f"s_add_u32 m0, m0, {PITCH - 1024}")

    ckv_rows(0, 8)
    A.label("L_f1")
    stamp(1)
    A(f"""
    v_and_b32 {v(vT + 4)}, 1, {v(vL)}
    v_lshlrev_b32 {v(vT + 4)}, 4, {v(vT + 4)}
    v_mov_b32 {v(vT + 5)}, 0xffff
    v_lshlrev_b32 {v(vT + 4)}, {v(vT + 4)}, {v(vT + 5)}
    v_lshrrev_b32 {v(vT + 5)}, 1, {v(vT + 3)}
    v_mov_b32 {v(vFF)}, 0xff
    """)
    for q in range(4):
        A.i(f"v_cmp_eq_u32 vcc, {q}, {v(vT + 5)}")
        A.i(f"v_cndmask_b32 {v(vM + q)}, 0, {v(vT + 4)}, vcc")
    A(f"""
    s_lshl_b32 {s(sB)}, {s(sW)}, 10
    v_add_u32 {v(vRW)}, {s(sB)}, {v(vRW)}
    """)
    vO = 7
    vQ = 78
    A(f"""
    v_and_b32 {v(vT + 4)}, 3, {v(vL)}
    v_lshl_add_u32 {v(vO)}, {v(vG)}, 2, {v(vT + 4)}
    v_lshrrev_b32 {v(vT + 5)}, 2, {v(vC16)}
    v_and_b32 {v(vT + 6)}, 8, {v(vO)}
    v_add_u32 {v(vT + 6)}, {v(vT + 6)}, {v(vO)}
    v_lshlrev_b32 {v(vT + 6)}, 4, {v(vT + 6)}
    v_lshl_add_u32 {v(vRR)}, {v(vT + 5)}, 10, {v(vT + 6)}
    v_add_u32 {v(vRR)}, {L_RED}, {v(vRR)}
    v_add_u32 {v(vT + 7)}, {L_RED}, {v(vRW)}
    s_and_b32 {s(sB)}, {s(sJ)}, 1
    s_lshl1_add_u32 {s(sB)}, {s(sH)}, {s(sB)}
    s_and_b32 {s(sC)}, {s(sJJ)}, 3
    s_lshl2_add_u32 {s(sB)}, {s(sB)}, {s(sC)}
    s_lshl_b32 {s(sB)}, {s(sB)}, 8
    s_add_u32 {s(sB)}, {s(sB)}, {WS_QP}
    v_lshl_add_u32 {v(vQ)}, {v(vO)}, 4, {s(sB)}
    s_waitcnt lgkmcnt(0)
    s_mul_i32 {s(sT)}, {s(sE)}, 0x9e3779b1
    s_add_u32 {s(sT)}, {s(sT)}, 0x7f4a7c15
    s_lshr_b32 {s(sT + 1)}, {s(sT)}, 8
    s_lshr_b32 {s(sT + 2)}, {s(sT)}, 16
    s_lshr_b32 {s(sT + 3)}, {s(sT)}, 24
    s_waitcnt vmcnt(12)
    """)
    stamp(2)
    xf = 80
    x4f = 88
    for k in range(4):
        A.i(f"v_lshlrev_b32 {v(xf + 2 * k)}, 16, {v(vXA + k)}")
        A.i(f"v_and_b32 {v(xf + 2 * k + 1)}, 0xffff0000, {v(vXA + k)}")
    sm = 92
    A.i(f"v_add_f32 {v(sm)}, {v(xf)}, {v(xf + 1)}")
    for k in range(2, 8):
        A.i(f"v_add_f32 {v(sm)}, {v(sm)}, {v(xf + k)}")
    row_allreduce("v_add_f32", [sm])
    for k in range(2):
        A.i(f"v_lshlrev_b32 {v(x4f + 2 * k)}, 16, {v(vX4 + k)}")
        A.i(f"v_and_b32 {v(x4f + 2 * k + 1)}, 0xffff0000, {v(vX4 + k)}")
    cross_rows("v_add_f32", [sm], 93)
    A.i(f"v_mul_f32 {v(sm)}, 0x3b000000, {v(sm)}")
    for k in range(8):
        A.i(f"v_sub_f32 {v(xf + k)}, {v(xf + k)}, {v(sm)}")
    sq = 94
    A.i(f"v_mul_f32 {v(sq)}, {v(xf)}, {v(xf)}")
    for k in range(1, 8):
        A.i(f"v_fmac_f32 {v(sq)}, {v(xf + k)}, {v(xf + k)}")
    row_allreduce("v_add_f32", [sq])
    for k in range(4):
        A.i(f"v_sub_f32 {v(x4f + k)}, {v(x4f + k)}, {v(sm)}")
    cross_rows("v_add_f32", [sq], 93)
    A(f"""
    v_mov_b32 {v(93)}, 0x3727c5ac
    v_fmac_f32 {v(93)}, 0x3b000000, {v(sq)}
    v_rsq_f32 {v(93)}, {v(93)}
    v_mul_f32 {v(93)}, 0x3e0293ee, {v(93)}
    """)
    for k in range(4):
        A.i(f"v_mul_f32 {v(x4f + k)}, {v(x4f + k)}, {v(93)}")
    for k in range(4):
        A.i(f"v_cvt_pk_bf16_f32 {v(x4f + k)}, {v(x4f + k)}, {v(x4f + k)}")
    D = 96
    sel_chain(D, [(x4f + u, None, v(vWQ + 4 * u, 4)) for u in range(4)], 100,
              waits=[f"s_waitcnt vmcnt({11 - u})" for u in range(4)])
    stamp(3)
    R0, R1 = 108, 112
    A(f"""
    ds_write_b128 {v(vT + 7)}, {v(D, 4)}
    s_waitcnt lgkmcnt(0)
    s_barrier
    ds_read_b128 {v(R0, 4)}, {v(vRR)}
    ds_read_b128 {v(R1, 4)}, {v(vRR)} offset:{40 * 16}
    s_lshl_b32 {s(sB)}, {s(sW)}, 4
    s_lshl_b64 {s(sC, 2)}, 15, {s(sB)}
    s_waitcnt lgkmcnt(0)
    """)
    for r in range(4):
        A.i(f"v_add_f32 {v(R0 + r)}, {v(R0 + r)}, {v(R1 + r)}")
    for ror in (4, 8):
        for r in range(4):
            A.i(f"v_add_f32_dpp {v(R0 + r)}, {v(R0 + r)}, {v(R0 + r)} row_ror:{ror} {DPPALL}")
    tag4(R0, R0)
    A(f"""
    s_mov_b64 exec, {s(sC, 2)}
    global_store_dwordx4 {v(vQ)}, {v(R0, 4)}, {s(pWS, 2)} sc1
    s_mov_b64 exec, -1
    """)
    stamp(4)
    A(f"""
    s_bitcmp1_b32 {s(sJ)}, 0
    s_cbranch_scc1 L_roleA
    """)

    Q = 20
    A(f"""
    s_lshl_b32 {s(sB)}, {s(sH)}, 11
    s_add_u32 {s(sB)}, {s(sB)}, {WS_QP}
    v_lshrrev_b32 {v(vT)}, 3, {v(vC16)}
    v_lshl_add_u32 {v(vT)}, {v(vT)}, 2, {v(vG)}
    v_lshlrev_b32 {v(vT)}, 8, {v(vT)}
    v_lshl_add_u32 {v(vT)}, {v(vT + 3)}, 4, {v(vT)}
    v_add_u32 {v(vA0)}, {s(sB)}, {v(vT)}
    s_lshl_b32 {s(sB)}, {s(sH)}, 9
    s_add_u32 {s(sB)}, {s(sB)}, {s(sA)}
    s_lshl_b32 {s(sB)}, {s(sB)}, 2
    s_add_u32 {s(sB)}, {s(sB)}, {WS_QL}
    v_lshl_add_u32 {v(vQ)}, {v(vT + 2)}, 4, {s(sB)}
    """)

    def ld_q():
        A.i(f"global_load_dwordx4 {v(Q, 4)}, {v(vA0)}, {s(pWS, 2)} sc1")
        A.i(f"global_load_dwordx4 {v(Q + 4, 4)}, {v(vA0)}, {s(pWS, 2)} offset:128 sc1")
    poll("q", ld_q, [Q, Q + 4], 28)
    stamp(5)
    for j in range(4):
        A.i(f"v_permlane32_swap_b32 {v(Q + j)}, {v(Q + 4 + j)}")
    for j in range(4):
        A.i(f"v_add_f32 {v(Q + j)}, {v(Q + j)}, {v(Q + 4 + j)}")
    for j in range(2):
        A.i(f"v_permlane16_swap_b32 {v(Q + j)}, {v(Q + 2 + j)}")
    for j in range(2):
        A.i(f"v_add_f32 {v(Q + j)}, {v(Q + j)}, {v(Q + 2 + j)}")
    B = 28
    A(f"""
    v_cvt_pk_bf16_f32 {v(B)}, {v(Q)}, {v(Q + 1)}
    v_cvt_pk_bf16_f32 {v(B + 1)}, {v(Q)}, {v(Q + 1)}
    v_permlane16_swap_b32 {v(B)}, {v(B + 1)}
    v_mov_b32 {v(B + 2)}, {v(B)}
    v_mov_b32 {v(B + 3)}, {v(B + 1)}
    v_permlane32_swap_b32 {v(B)}, {v(B + 2)}
    v_permlane32_swap_b32 {v(B + 1)}, {v(B + 3)}
    """)
    acc = 32
    for q in range(4):
        for u in range(8):
            A.i(f"v_dot2_f32_bf16 {v(acc + u)}, {v(vRole + 4 * u + q)}, {v(B + q)}, {'0' if q == 0 else v(acc + u)}")
    X = 40
    for r in range(4):
        A.i(f"v_add_f32_dpp {v(X + r)}, {v(acc + r)}, {v(acc + r)} row_ror:8 row_mask:0xf bank_mask:0x3")
    for r in range(4):
        A.i(f"v_add_f32_dpp {v(X + r)}, {v(acc + 4 + r)}, {v(acc + 4 + r)} row_ror:8 row_mask:0xf bank_mask:0xc")
    for mod in ("row_half_mirror", "quad_perm:[1,0,3,2]", "quad_perm:[2,3,0,1]"):
        for r in range(4):
            A.i(f"v_add_f32_dpp {v(X + r)}, {v(X + r)}, {v(X + r)} {mod} {DPPALL}")
    tag4(X, X)
    setexec(0x01010101, 0x01010101)
    A.i(f"global_store_dwordx4 {v(vQ)}, {v(X, 4)}, {s(pWS, 2)} sc1")
    execall()
    stamp(6)
    vPH, vK = vT + 4, vT + 5
    A(f"""
    v_bfe_u32 {v(vPH)}, {v(vL)}, 2, 1
    v_and_b32 {v(vK)}, 3, {v(vL)}
    s_cmp_ge_u32 {s(sJJ)}, 8
    s_cbranch_scc1 L_roleFFN
    """)

    def ph_reduce(dst, src):
        for r in range(4):
            A.i(f"v_add_f32_dpp {v(dst + r)}, {v(src + r)}, {v(src + r)} row_shl:4 row_mask:0xf bank_mask:0x5")
        for r in range(4):
            A.i(f"v_add_f32_dpp {v(dst + r)}, {v(src + r)}, {v(src + r)} row_shr:4 row_mask:0xf bank_mask:0xa")

    WO = 64
    A(f"""
    s_lshl2_add_u32 {s(sB)}, {s(sX)}, {s(sW)}
    s_lshl_b32 {s(sC)}, {s(sB)}, 17
    s_lshl_b32 {s(sD)}, {s(sJJ)}, 7
    s_add_u32 {s(sC)}, {s(sC)}, {s(sD)}
    v_lshlrev_b32 {v(vT)}, 14, {v(vT + 2)}
    v_lshl_add_u32 {v(vT)}, {v(vT + 3)}, 4, {v(vT)}
    v_add_u32 {v(44)}, {s(sC)}, {v(vT)}
    """)
    for u in range(16):
        A.i(f"global_load_dwordx4 {v(WO + 4 * u, 4)}, {v(44)}, {s(pWO, 2)} offset:{(u & 3) * 1024} nt")
        if (u & 3) == 3 and u < 15:
            A.i(f"v_add_u32 {v(44)}, 0x1000, {v(44)}")
        if u in opt.get("o_gates", ()):
            A.i("s_waitcnt vmcnt(0)")
    A(f"""
    s_lshl_b32 {s(sB)}, {s(sB)}, 11
    s_add_u32 {s(sB)}, {s(sB)}, {WS_CP}
    v_lshlrev_b32 {v(vT)}, 9, {v(vPH)}
    v_lshl_add_u32 {v(vT)}, {v(vT + 2)}, 6, {v(vT)}
    v_lshl_add_u32 {v(vT)}, {v(vK)}, 4, {v(vT)}
    v_add_u32 {v(44)}, {s(sB)}, {v(vT)}
    s_lshl_b32 {s(sB)}, {s(sX)}, 11
    s_lshl_b32 {s(sD)}, {s(sJJ)}, 8
    s_add_u32 {s(sB)}, {s(sB)}, {s(sD)}
    s_add_u32 {s(sB)}, {s(sB)}, {WS_OP}
    v_lshl_add_u32 {v(45)}, {v(vO)}, 4, {s(sB)}
    v_and_b32 {v(vT)}, 1, {v(vO)}
    v_lshrrev_b32 {v(vT + 1)}, 1, {v(vO)}
    v_lshl_add_u32 {v(vT)}, {v(vT)}, 4, {v(vT + 1)}
    v_lshrrev_b32 {v(vT + 1)}, 2, {v(vC16)}
    v_lshlrev_b32 {v(vT + 1)}, 10, {v(vT + 1)}
    v_lshl_add_u32 {v(vRR)}, {v(vT)}, 4, {v(vT + 1)}
    s_lshl_b32 {s(sB)}, {s(sW)}, 4
    s_lshl_b64 {s(sC, 2)}, 15, {s(sB)}
    s_waitcnt vmcnt(0)
    """)
    stamp(7)
    G = 20

    def ld_cp():
        A.i(f"global_load_dwordx4 {v(G, 4)}, {v(44)}, {s(pWS, 2)} sc1")
        A.i(f"global_load_dwordx4 {v(G + 4, 4)}, {v(44)}, {s(pWS, 2)} offset:1024 sc1")
    poll("cp", ld_cp, [G, G + 4], 28, sleep=opt.get("sleep", 0))
    stamp(8)
    for r in range(4):
        A.i(f"v_add_f32 {v(G + r)}, {v(G + r)}, {v(G + 4 + r)}")
    ph_reduce(28, G)
    for r in range(4):
        A.i(f"v_cvt_pk_bf16_f32 {v(28 + r)}, {v(28 + r)}, {v(28 + r)}")
    D = 32
    sel_chain(D, [(28 + (u & 3), f"quad_perm:[{u >> 2},{u >> 2},{u >> 2},{u >> 2}]", v(WO + 4 * u, 4)) for u in range(16)], 36)
    R0, R1 = 48, 52
    A(f"""
    ds_write_b128 {v(vRW)}, {v(D, 4)}
    s_waitcnt lgkmcnt(0)
    s_barrier
    ds_read_b128 {v(R0, 4)}, {v(vRR)}
    ds_read_b128 {v(R1, 4)}, {v(vRR)} offset:{40 * 16}
    s_waitcnt lgkmcnt(0)
    """)
    for r in range(4):
        A.i(f"v_add_f32 {v(R0 + r)}, {v(R0 + r)}, {v(R1 + r)}")
    for ror in (4, 8):
        for r in range(4):
            A.i(f"v_add_f32_dpp {v(R0 + r)}, {v(R0 + r)}, {v(R0 + r)} row_ror:{ror} {DPPALL}")
    tag4(R0, R0)
    A(f"""
    s_mov_b64 exec, {s(sC, 2)}
    global_store_dwordx4 {v(45)}, {v(R0, 4)}, {s(pWS, 2)} sc1
    """)
    stamp(9)
    finish_stamps()
    A.i("s_endpgm")

    A.label("L_roleFFN")
    sFI = 37
    A(f"""
    s_sub_u32 {s(sFI)}, {s(sJJ)}, 8
    s_lshl3_add_u32 {s(sFI)}, {s(sFI)}, {s(sX)}
    s_cmp_ge_u32 {s(sFI)}, 43
    s_cbranch_scc1 L_idle
    """)
    WGU = 64
    WD = 128
    vXH = 160
    vWR = 166
    A(f"""
    s_lshl_b32 {s(sB)}, {s(sW)}, 7
    v_lshl_add_u32 {v(vT)}, {v(vT + 2)}, 4, {s(sB)}
    v_lshl_add_u32 {v(vT + 1)}, {v(vK)}, 2, {v(vT)}
    v_lshlrev_b32 {v(46)}, 1, {v(vT + 1)}
    global_load_dwordx2 {v(vXH, 2)}, {v(46)}, {s(pX, 2)}
    v_lshlrev_b32 {v(47)}, 4, {v(vL)}
    global_load_dwordx4 {v(vWR, 4)}, {v(47)}, {s(pWR, 2)}
    v_mul_u32_u24 {v(vT)}, 2752, {v(vT)}
    s_lshl_b32 {s(sB)}, {s(sFI)}, 6
    v_lshl_add_u32 {v(48)}, {v(vK)}, 4, {s(sB)}
    v_add_u32 {v(48)}, {v(48)}, {v(vT)}
    v_mov_b32 {v(49)}, 0
    v_cmp_eq_u32 vcc, 0, {v(vPH)}
    v_mov_b32 {v(50)}, {s(pWU)}
    v_mov_b32 {v(51)}, {s(pWU + 1)}
    v_mov_b32 {v(52)}, {s(pWG)}
    v_mov_b32 {v(53)}, {s(pWG + 1)}
    v_cndmask_b32 {v(50)}, {v(50)}, {v(52)}, vcc
    v_cndmask_b32 {v(51)}, {v(51)}, {v(53)}, vcc
    v_lshl_add_u64 {v(48, 2)}, {v(48, 2)}, 0, {v(50, 2)}
    s_mov_b32 {s(sC)}, {2 * 2752}
    s_mov_b32 {s(sD)}, 0
    """)
    for u in range(16):
        A.i(f"global_load_dwordx4 {v(WGU + 4 * u, 4)}, {v(48, 2)}, off offset:{(u & 1) * 2752} nt")
        if (u & 1) and u < 15:
            A.i(f"v_lshl_add_u64 {v(48, 2)}, {v(48, 2)}, 0, {s(sC, 2)}")
        if u in opt.get("f_gates", ()):
            A.i("s_waitcnt vmcnt(0)")
    A(f"""
    s_lshl_b32 {s(sB)}, {s(sFI)}, 15
    s_lshl_b32 {s(sC)}, {s(sW)}, 8
    s_add_u32 {s(sB)}, {s(sB)}, {s(sC)}
    v_lshlrev_b32 {v(vT)}, 13, {v(vG)}
    v_lshl_add_u32 {v(vT)}, {v(vC16)}, 4, {v(vT)}
    v_add_u32 {v(44)}, {s(sB)}, {v(vT)}
    """)
    for u in range(8):
        A.i(f"global_load_dwordx4 {v(WD + 4 * u, 4)}, {v(44)}, {s(pWD, 2)} offset:{(u & 3) * 1024} nt")
        if u == 3:
            A.i(f"v_add_u32 {v(44)}, 0x1000, {v(44)}")
    L_RF = 4096
    A(f"""
    v_lshlrev_b32 {v(46)}, 2, {v(vT + 1)}
    v_lshl_add_u32 {v(44)}, {v(vPH)}, 11, {v(46)}
    v_add_u32 {v(44)}, {WS_OP + 4096}, {v(44)}
    v_add_u32 {v(45)}, 0x2000, {v(44)}
    v_add_u32 {v(vRW)}, {L_RF}, {v(vRW)}
    v_and_b32 {v(vT)}, 1, {v(vL)}
    v_lshlrev_b32 {v(vT)}, 4, {v(vT)}
    v_and_b32 {v(vT + 1)}, 2, {v(vL)}
    v_lshl_add_u32 {v(vT)}, {v(vT + 1)}, 1, {v(vT)}
    v_add_u32 {v(vT)}, {v(vT)}, {v(vG)}
    v_lshrrev_b32 {v(vT + 1)}, 2, {v(vC16)}
    v_lshlrev_b32 {v(vT + 1)}, 10, {v(vT + 1)}
    v_lshl_add_u32 {v(vRR)}, {v(vT)}, 4, {v(vT + 1)}
    v_add_u32 {v(vRR)}, {L_RF}, {v(vRR)}
    s_lshl_b32 {s(sB)}, {s(sFI)}, 11
    s_lshl_b32 {s(sC)}, {s(sW)}, 9
    s_add_u32 {s(sB)}, {s(sB)}, {s(sC)}
    s_add_u32 {s(sB)}, {s(sB)}, {WS_YP}
    v_add_u32 {v(54)}, {s(sB)}, {v(47)}
    s_lshl_b32 {s(sB)}, {s(sW)}, 3
    s_add_u32 {s(sB)}, {s(sB)}, {L_ST}
    v_mov_b32 {v(55)}, {s(sB)}
    v_mov_b32 {v(56)}, 0
    v_mov_b32 {v(28)}, 0x3f803f80
    s_waitcnt vmcnt(8)
    """)
    XF = 162
    for k in range(2):
        A.i(f"v_lshlrev_b32 {v(XF + 2 * k)}, 16, {v(vXH + k)}")
        A.i(f"v_and_b32 {v(XF + 2 * k + 1)}, 0xffff0000, {v(vXH + k)}")
    D = 32
    CS = 170
    R0, R1 = 48, 60

    def gu_reduce(dst):
        A(f"""
        ds_read_b128 {v(dst, 4)}, {v(vRR)}
        ds_read_b128 {v(R1, 4)}, {v(vRR)} offset:{40 * 16}
        """)

    def gu_sum(dst):
        for r in range(4):
            A.i(f"v_add_f32 {v(dst + r)}, {v(dst + r)}, {v(R1 + r)}")
        for ror in (4, 8):
            for r in range(4):
                A.i(f"v_add_f32_dpp {v(dst + r)}, {v(dst + r)}, {v(dst + r)} row_ror:{ror} {DPPALL}")

    for q in range(4):
        A.i(f"v_and_b32 {v(36 + q)}, {v(28)}, {v(vM + q)}")
    for u in range(16):
        A.i(f"v_mfma_f32_16x16x32_bf16 {v(D, 4)}, {v(36, 4)}, {v(WGU + 4 * u, 4)}, {'0' if u == 0 else v(D, 4)}")
    A(f"""
    ds_write_b128 {v(vRW)}, {v(D, 4)}
    s_waitcnt lgkmcnt(0)
    s_barrier
    """)
    gu_reduce(CS + 2)
    CS = CS + 2
    A.i("s_waitcnt lgkmcnt(0)")
    gu_sum(CS)
    A(f"""
    s_barrier
    s_waitcnt vmcnt(0)
    """)
    stamp(7)
    G = 176

    def ld_op():
        A.i(f"global_load_dwordx4 {v(G, 4)}, {v(44)}, {s(pWS, 2)} offset:-4096 sc1")
        A.i(f"global_load_dwordx4 {v(G + 4, 4)}, {v(44)}, {s(pWS, 2)} sc1")
        A.i(f"global_load_dwordx4 {v(G + 8, 4)}, {v(45)}, {s(pWS, 2)} offset:-4096 sc1")
        A.i(f"global_load_dwordx4 {v(G + 12, 4)}, {v(45)}, {s(pWS, 2)} sc1")
    poll("op", ld_op, [G, G + 4, G + 8, G + 12], 28, sleep=opt.get("sleep", 0))
    stamp(8)
    for r in range(4):
        A.i(f"v_add_f32 {v(G + r)}, {v(G + r)}, {v(G + 4 + r)}")
        A.i(f"v_add_f32 {v(G + 8 + r)}, {v(G + 8 + r)}, {v(G + 12 + r)}")
    for r in range(4):
        A.i(f"v_add_f32 {v(G + r)}, {v(G + r)}, {v(G + 8 + r)}")
    ph_reduce(28, G)
    for r in range(4):
        A.i(f"v_add_f32 {v(28 + r)}, {v(28 + r)}, {v(XF + r)}")
    for r in range(4):
        A.i(f"v_cvt_pk_bf16_f32 {v(28 + r)}, {v(28 + r)}, {v(28 + r)}")
    sel_chain(D, [(28 + (u & 3), f"quad_perm:[{u >> 2},{u >> 2},{u >> 2},{u >> 2}]", v(WGU + 4 * u, 4)) for u in range(16)], 36)
    HF = 20
    for r in range(4):
        A.i(f"v_and_b32 {v(HF + r)}, 0xffff0000, {v(28 + r)}")
    A(f"""
    ds_write_b128 {v(46)}, {v(HF, 4)}
    v_add_f32 {v(24)}, {v(HF)}, {v(HF + 1)}
    v_add_f32 {v(25)}, {v(HF + 2)}, {v(HF + 3)}
    v_add_f32 {v(24)}, {v(24)}, {v(25)}
    ds_write_b128 {v(vRW)}, {v(D, 4)}
    """)
    row_allreduce("v_add_f32", [24])
    cross_rows("v_add_f32", [24], 26)
    A.i(f"v_mul_f32 {v(24)}, 0x3b800000, {v(24)}")
    for r in range(4):
        A.i(f"v_sub_f32 {v(HF + r)}, {v(HF + r)}, {v(24)}")
    A.i(f"v_mul_f32 {v(25)}, {v(HF)}, {v(HF)}")
    for r in range(1, 4):
        A.i(f"v_fmac_f32 {v(25)}, {v(HF + r)}, {v(HF + r)}")
    row_allreduce("v_add_f32", [25])
    cross_rows("v_add_f32", [25], 26)
    S0 = 36
    A(f"""
    ds_write_b64 {v(55)}, {v(24, 2)}
    s_waitcnt lgkmcnt(0)
    s_barrier
    ds_read_b128 {v(S0, 4)}, {v(56)} offset:{L_ST}
    ds_read_b128 {v(S0 + 4, 4)}, {v(56)} offset:{L_ST + 16}
    """)
    gu_reduce(R0)
    MU, RS = 24, 25
    A(f"""
    s_waitcnt lgkmcnt(2)
    v_add_f32 {v(MU)}, {v(S0)}, {v(S0 + 2)}
    v_add_f32 {v(26)}, {v(S0 + 4)}, {v(S0 + 6)}
    v_add_f32 {v(RS)}, {v(S0 + 1)}, {v(S0 + 3)}
    v_add_f32 {v(27)}, {v(S0 + 5)}, {v(S0 + 7)}
    v_add_f32 {v(MU)}, {v(MU)}, {v(26)}
    v_add_f32 {v(RS)}, {v(RS)}, {v(27)}
    v_mul_f32 {v(MU)}, 0x3e800000, {v(MU)}
    v_mul_f32 {v(RS)}, 0x3b800000, {v(RS)}
    """)
    for k in range(4):
        A.i(f"v_sub_f32 {v(S0 + 2 * k)}, {v(S0 + 2 * k)}, {v(MU)}")
    for k in range(4):
        A.i(f"v_fmac_f32 {v(RS)}, {v(S0 + 2 * k)}, {v(S0 + 2 * k)}")
    A(f"""
    v_mov_b32 {v(26)}, 0x3727c5ac
    v_fmac_f32 {v(26)}, 0x3e800000, {v(RS)}
    v_rsq_f32 {v(RS)}, {v(26)}
    s_waitcnt lgkmcnt(0)
    """)
    gu_sum(R0)
    for r in range(4):
        A.i(f"v_fma_f32 {v(R0 + r)}, -{v(MU)}, {v(CS + r)}, {v(R0 + r)}")
    for r in range(4):
        A.i(f"v_mul_f32 {v(R0 + r)}, {v(R0 + r)}, {v(RS)}")
    E = 28
    for r in range(4):
        A.i(f"v_mul_f32 {v(E + r)}, 0xbfb8aa3b, {v(R0 + r)}")
    for r in range(4):
        A.i(f"v_exp_f32 {v(E + r)}, {v(E + r)}")
    for r in range(4):
        A.i(f"v_add_f32 {v(E + r)}, 1.0, {v(E + r)}")
    for r in range(4):
        A.i(f"v_rcp_f32 {v(E + r)}, {v(E + r)}")
    for r in range(4):
        A.i(f"v_mul_f32 {v(E + r)}, {v(E + r)}, {v(R0 + r)}")
    for r in range(4):
        A.i(f"v_mul_f32_dpp {v(E + r)}, {v(R0 + r)}, {v(E + r)} quad_perm:[2,3,2,3] {DPPALL}")
    for r in range(4):
        A.i(f"v_cvt_pk_bf16_f32 {v(E + r)}, {v(E + r)}, {v(E + r)}")
    sel_chain(D, [(E + (u & 3), f"quad_perm:[{u >> 2},{u >> 2},{u >> 2},{u >> 2}]", v(WD + 4 * u, 4)) for u in range(8)], 36)
    tag4(D, D)
    setexec(0xFFFFFFFF, 0)
    A.i(f"global_store_dwordx4 {v(54)}, {v(D, 4)}, {s(pWS, 2)} sc1")
    execall()
    stamp(9)
    A(f"""
    s_cmp_ge_u32 {s(sFI)}, 16
    s_cbranch_scc1 L_idle
    s_cmp_lg_u32 {s(sW)}, 0
    s_cbranch_scc1 L_idle
    """)
    HA = 64
    HZ = 72
    A(f"""
    v_lshlrev_b32 {v(44)}, 5, {v(vL)}
    ds_read_b128 {v(HA, 4)}, {v(44)}
    ds_read_b128 {v(HA + 4, 4)}, {v(44)} offset:16
    s_lshr_b32 {s(sB)}, {s(sFI)}, 2
    s_lshl_b32 {s(sB)}, {s(sB)}, 7
    s_and_b32 {s(sC)}, {s(sFI)}, 1
    s_lshl_b32 {s(sC)}, {s(sC)}, 6
    s_add_u32 {s(sB)}, {s(sB)}, {s(sC)}
    s_and_b32 {s(sC)}, {s(sFI)}, 2
    s_lshl1_add_u32 {s(sB)}, {s(sC)}, {s(sB)}
    v_lshl_add_u32 {v(45)}, {v(vT + 3)}, 3, {s(sB)}
    v_lshlrev_b32 {v(46)}, 2, {v(45)}
    ds_read_b128 {v(HZ, 4)}, {v(46)}
    v_lshlrev_b32 {v(45)}, 1, {v(45)}
    s_lshl_b32 {s(sB)}, {s(sFI)}, 7
    s_add_u32 {s(sB)}, {s(sB)}, {WS_YP}
    v_lshl_add_u32 {v(47)}, {v(vT + 3)}, 4, {s(sB)}
    """)
    YA = 48
    for a in range(6):
        if a < 5:
            A.i(f"v_add_u32 {v(vT)}, {8 * a}, {v(vT + 2)}")
        else:
            A.i(f"v_add_u32 {v(vT)}, 40, {v(vT + 2)}")
            A.i(f"v_min_u32 {v(vT)}, 42, {v(vT)}")
        A.i(f"v_lshl_add_u32 {v(YA + a)}, {v(vT)}, 11, {v(47)}")
    WRF = 76
    for k in range(4):
        A.i(f"v_lshlrev_b32 {v(WRF + 2 * k)}, 16, {v(vWR + k)}")
        A.i(f"v_and_b32 {v(WRF + 2 * k + 1)}, 0xffff0000, {v(vWR + k)}")
    A.i("s_waitcnt lgkmcnt(0)")
    for k in range(8):
        A.i(f"v_sub_f32 {v(HA + k)}, {v(HA + k)}, {v(MU)}")
    A.i(f"v_mul_f32 {v(84)}, {v(HA)}, {v(WRF)}")
    for k in range(1, 8):
        A.i(f"v_fmac_f32 {v(84)}, {v(HA + k)}, {v(WRF + k)}")
    row_allreduce("v_add_f32", [84])
    cross_rows("v_add_f32", [84], 85)
    A(f"""
    v_mul_f32 {v(84)}, {v(84)}, {v(RS)}
    v_mul_f32 {v(84)}, 0xbfb8aa3b, {v(84)}
    v_exp_f32 {v(84)}, {v(84)}
    v_add_f32 {v(84)}, 1.0, {v(84)}
    v_rcp_f32 {v(84)}, {v(84)}
    """)
    for r in range(4):
        A.i(f"v_sub_f32 {v(88 + r)}, {v(HZ + r)}, {v(MU)}")
    for r in range(4):
        A.i(f"v_fmac_f32 {v(HZ + r)}, {v(88 + r)}, {v(RS)}")
    A(f"""
    v_cmp_gt_u32 vcc, 3, {v(vT + 2)}
    v_cndmask_b32 {v(86)}, 0, 1.0, vcc
    """)
    Y = 96

    def ld_yp():
        for a in range(6):
            A.i(f"global_load_dwordx4 {v(Y + 4 * a, 4)}, {v(YA + a)}, {s(pWS, 2)} sc1")
    poll("yp", ld_yp, [Y + 4 * a for a in range(6)], 87)
    stamp(10)
    for r in range(4):
        A.i(f"v_add_f32 {v(Y + r)}, {v(Y + r)}, {v(Y + 4 + r)}")
        A.i(f"v_add_f32 {v(Y + 8 + r)}, {v(Y + 8 + r)}, {v(Y + 12 + r)}")
        A.i(f"v_fmac_f32 {v(Y + 16 + r)}, {v(Y + 20 + r)}, {v(86)}")
    for r in range(4):
        A.i(f"v_add_f32 {v(Y + r)}, {v(Y + r)}, {v(Y + 8 + r)}")
    for r in range(4):
        A.i(f"v_add_f32 {v(Y + r)}, {v(Y + r)}, {v(Y + 16 + r)}")
    for r in range(4):
        A.i(f"v_add_f32_dpp {v(Y + r)}, {v(Y + r)}, {v(Y + r)} row_ror:8 {DPPALL}")
    cross_rows("v_add_f32", [Y + r for r in range(4)], Y + 4)
    for r in range(4):
        A.i(f"v_fmac_f32 {v(HZ + r)}, {v(Y + r)}, {v(84)}")
    A(f"""
    v_cvt_pk_bf16_f32 {v(HZ)}, {v(HZ)}, {v(HZ + 1)}
    v_cvt_pk_bf16_f32 {v(HZ + 1)}, {v(HZ + 2)}, {v(HZ + 3)}
    s_mov_b64 exec, 0xff
    global_store_dwordx2 {v(45)}, {v(HZ, 2)}, {s(pOUT, 2)}
    s_cmp_lg_u32 {s(sFI)}, 0
    s_cbranch_scc1 L_idle
    s_add_u32 {s(sE)}, {s(sE)}, 1
    s_mov_b64 exec, 1
    v_mov_b32 {v(44)}, {s(sE)}
    global_store_dword {v(56)}, {v(44)}, {s(pWS, 2)} sc1
    """)
    A.label("L_idle")
    stamp(11)
    finish_stamps()
    A.i("s_endpgm")

    A.label("L_roleA")
    ckv_rows(8, 16)
    vK0, vK1, vQR, vV0, vV1 = 20, 21, 22, 23, 24
    QA = 26
    vQW = 25
    A(f"""
    v_subrev_u32 {v(vA1)}, 0x4000, {v(vA1)}
    v_xor_b32 {v(vA1)}, 0x10000, {v(vA1)}
    s_add_u32 m0, m0, {48 * PITCH}
    s_mul_i32 {s(sB)}, {s(sW)}, {16 * PITCH}
    v_mul_u32_u24 {v(vT)}, {PITCH}, {v(vC16)}
    v_lshl_add_u32 {v(vT)}, {v(vG)}, 4, {v(vT)}
    v_add_u32 {v(vK0)}, {s(sB)}, {v(vT)}
    v_add_u32 {v(vK1)}, {64 * PITCH}, {v(vK0)}
    v_add_u32 {v(vQR)}, {L_QL}, {v(vT)}
    v_lshrrev_b32 {v(vT)}, 2, {v(vL)}
    v_mul_u32_u24 {v(vT)}, {PITCH}, {v(vT)}
    v_and_b32 {v(vT + 1)}, 3, {v(vL)}
    v_lshl_add_u32 {v(vT)}, {v(vT + 1)}, 3, {v(vT)}
    s_lshl_b32 {s(sB)}, {s(sW)}, 8
    v_add_u32 {v(vV0)}, {s(sB)}, {v(vT)}
    v_add_u32 {v(vV1)}, {64 * PITCH}, {v(vV0)}
    s_and_b32 {s(sB)}, {s(sJJ)}, 1
    s_lshl_b32 {s(sB)}, {s(sB)}, 15
    s_add_u32 {s(sB)}, {s(sB)}, {WS_QL + 4096}
    v_add_u32 {v(QA)}, {s(sB)}, {v(vRW)}
    v_add_u32 {v(QA + 1)}, 0x2000, {v(QA)}
    v_add_u32 {v(QA + 2)}, 0x4000, {v(QA)}
    v_add_u32 {v(QA + 3)}, 0x6000, {v(QA)}
    s_lshr_b32 {s(sB)}, {s(sW)}, 1
    s_mul_i32 {s(sB)}, {s(sB)}, {PITCH}
    s_and_b32 {s(sC)}, {s(sW)}, 1
    s_lshl_b32 {s(sC)}, {s(sC)}, 9
    s_add_u32 {s(sB)}, {s(sB)}, {s(sC)}
    s_add_u32 {s(sB)}, {s(sB)}, {L_QL}
    v_lshl_add_u32 {v(vQW)}, {v(vL)}, 3, {s(sB)}
    s_waitcnt vmcnt(0)
    """)
    stamp(5)
    ckv_rows(0, 16)
    for sidx in range(16):
        A.i(f"ds_read_b128 {a_(4 * sidx, 4)}, {v(vK0)} offset:{64 * sidx}")
    QG = 32

    def ld_ql():
        for i in range(8):
            A.i(f"global_load_dwordx4 {v(QG + 4 * i, 4)}, {v(QA + (i >> 1))}, {s(pWS, 2)} offset:{-4096 if not (i & 1) else 0} sc1")
    poll("ql", ld_ql, [QG + 4 * i for i in range(8)], 30)
    stamp(6)
    for sidx in range(16):
        A.i(f"ds_read_b128 {a_(64 + 4 * sidx, 4)}, {v(vK1)} offset:{64 * sidx}")
    WUV = 160
    A(f"""
    s_and_b32 {s(sB)}, {s(sJJ)}, 3
    s_lshl_b32 {s(sB)}, {s(sB)}, 5
    s_add_u32 {s(sB)}, {s(sB)}, {s(sW)}
    s_lshl_b32 {s(sB)}, {s(sB)}, 15
    s_lshl_b32 {s(sC)}, {s(sH)}, 8
    s_add_u32 {s(sB)}, {s(sB)}, {s(sC)}
    v_lshlrev_b32 {v(vT)}, 13, {v(vG)}
    v_lshl_add_u32 {v(vT)}, {v(vC16)}, 4, {v(vT)}
    v_add_u32 {v(vA0)}, {s(sB)}, {v(vT)}
    """)
    for i in range(8):
        A.i(f"v_cvt_pk_bf16_f32 {v(QG + 4 * i)}, {v(QG + 4 * i)}, {v(QG + 4 * i + 1)}")
        A.i(f"v_cvt_pk_bf16_f32 {v(QG + 4 * i + 1)}, {v(QG + 4 * i + 2)}, {v(QG + 4 * i + 3)}")
        A.i(f"ds_write_b64 {v(vQW)}, {v(QG + 4 * i, 2)} offset:{2 * PITCH * i}")
    for u in range(8):
        A.i(f"global_load_dwordx4 {v(WUV + 4 * u, 4)}, {v(vA0)}, {s(pWUV, 2)} nt")
        if u < 7:
            A.i(f"v_add_u32 {v(vA0)}, 0x20000, {v(vA0)}")
    A(f"""
    s_waitcnt lgkmcnt(0)
    s_barrier
    """)
    stamp(7)
    QF = 80
    S0, S1 = 32, 36
    vreads = []
    for u in range(4):
        for t in range(8):
            base = 128 + 4 * (8 * u + t)
            vreads.append(f"ds_read_b64_tr_b16 {a_(base, 2)}, {v(vV0)} offset:{u * 16 * PITCH + 32 * t}")
            vreads.append(f"ds_read_b64_tr_b16 {a_(base + 2, 2)}, {v(vV1)} offset:{u * 16 * PITCH + 32 * t}")
    for sidx in range(12):
        A.i(f"ds_read_b128 {v(QF + 4 * sidx, 4)}, {v(vQR)} offset:{64 * sidx}")
    issued = list(range(12))
    vi = 0
    for sidx in range(16):
        pos = issued.index(sidx)
        A.i(f"s_waitcnt lgkmcnt({min(15, len(issued) - 1 - pos)})")
        A.i(f"v_mfma_f32_16x16x32_bf16 {v(S0, 4)}, {a_(4 * sidx, 4)}, {v(QF + 4 * sidx, 4)}, {'0' if sidx == 0 else v(S0, 4)}")
        if sidx < 4:
            A.i(f"ds_read_b128 {v(QF + 4 * (12 + sidx), 4)}, {v(vQR)} offset:{64 * (12 + sidx)}")
            issued.append(12 + sidx)
        else:
            A.i(vreads[vi]); vi += 1; issued.append(-1)
        A.i(f"v_mfma_f32_16x16x32_bf16 {v(S1, 4)}, {a_(64 + 4 * sidx, 4)}, {v(QF + 4 * sidx, 4)}, {'0' if sidx == 0 else v(S1, 4)}")
        if sidx >= 4:
            A.i(vreads[vi]); vi += 1; issued.append(-1)
    for _ in range(8):
        A.i(vreads[vi]); vi += 1
    stamp(8)
    MX = 40
    A(f"""
    v_max3_f32 {v(MX)}, {v(S0)}, {v(S0 + 1)}, {v(S0 + 2)}
    v_max3_f32 {v(MX + 1)}, {v(S0 + 3)}, {v(S1)}, {v(S1 + 1)}
    v_max3_f32 {v(MX)}, {v(MX)}, {v(S1 + 2)}, {v(S1 + 3)}
    v_max_f32 {v(MX)}, {v(MX)}, {v(MX + 1)}
    """)
    cross_rows("v_max_f32", [MX], MX + 1)
    A.i(f"v_ceil_f32 {v(MX)}, {v(MX)}")
    for k in range(8):
        A.i(f"v_sub_f32 {v(S0 + k)}, {v(S0 + k)}, {v(MX)}")
        A.i(vreads[vi]); vi += 1
    for k in range(8):
        A.i(f"v_exp_f32 {v(S0 + k)}, {v(S0 + k)}")
        A.i(vreads[vi]); vi += 1
    for k in range(4):
        A.i(f"v_cvt_pk_bf16_f32 {v(S0 + k)}, {v(S0 + 2 * k)}, {v(S0 + 2 * k + 1)}")
    A(f"""
    v_add_u32 {v(vT)}, {L_PB}, {v(vRW)}
    s_lshl_b32 {s(sB)}, {s(sW)}, 2
    s_add_u32 {s(sB)}, {s(sB)}, {L_M}
    v_lshl_add_u32 {v(vT + 1)}, {v(vC16)}, 4, {s(sB)}
    ds_write_b128 {v(vT)}, {v(S0, 4)}
    ds_write_b32 {v(vT + 1)}, {v(MX)}
    v_lshlrev_b32 {v(vT)}, 4, {v(vL)}
    v_add_u32 {v(vT)}, {L_PB}, {v(vT)}
    v_lshlrev_b32 {v(vT + 1)}, 4, {v(vC16)}
    v_add_u32 {v(vT + 1)}, {L_M}, {v(vT + 1)}
    s_waitcnt lgkmcnt(0)
    s_barrier
    """)
    P = 48
    MM = 44
    A.i(f"ds_read_b128 {v(MM, 4)}, {v(vT + 1)}")
    for u in range(4):
        A.i(f"ds_read_b128 {v(P + 4 * u, 4)}, {v(vT)} offset:{1024 * u}")
    nrest = len(vreads) - vi
    for _ in range(8):
        A.i(vreads[vi]); vi += 1
    ONES = 64
    HD = 68
    for q in range(4):
        A.i(f"v_mov_b32 {v(ONES + q)}, 0x3f803f80")
    A(f"""
    s_waitcnt lgkmcnt(12)
    v_max3_f32 {v(HD)}, {v(MM)}, {v(MM + 1)}, {v(MM + 2)}
    v_max_f32 {v(HD)}, {v(HD)}, {v(MM + 3)}
    """)
    for u in range(4):
        A.i(f"v_sub_f32 {v(MM + u)}, {v(HD)}, {v(MM + u)}")
    for u in range(4):
        A.i(f"v_cvt_u32_f32 {v(MM + u)}, {v(MM + u)}")
    for u in range(4):
        A.i(f"v_min_u32 {v(MM + u)}, 0xff, {v(MM + u)}")
    for u in range(4):
        A.i(f"v_mul_u32_u24 {v(MM + u)}, 0x800080, {v(MM + u)}")
    A.i("s_waitcnt lgkmcnt(8)")
    for u in range(4):
        for q in range(4):
            A.i(f"v_pk_sub_u16 {v(P + 4 * u + q)}, {v(P + 4 * u + q)}, {v(MM + u)} clamp")
    while vi < len(vreads):
        A.i(vreads[vi]); vi += 1
    ACC = 80
    LL = 72
    for u in range(4):
        if u == 3:
            A.i("s_waitcnt lgkmcnt(0)")
        for t in range(8):
            A.i(f"v_mfma_f32_16x16x32_bf16 {v(ACC + 4 * t, 4)}, {v(P + 4 * u, 4)}, {a_(128 + 4 * (8 * u + t), 4)}, {'0' if u == 0 else v(ACC + 4 * t, 4)}")
    for u in range(4):
        A.i(f"v_mfma_f32_16x16x32_bf16 {v(LL, 4)}, {v(ONES, 4)}, {v(P + 4 * u, 4)}, {'0' if u == 0 else v(LL, 4)}")
    stamp(9)
    A(f"""
    s_and_b32 {s(sB)}, {s(sJJ)}, 1
    s_lshl_b32 {s(sB)}, {s(sB)}, 20
    s_lshl_b32 {s(sC)}, {s(sW)}, 14
    s_add_u32 {s(sB)}, {s(sB)}, {s(sC)}
    s_lshr_b32 {s(sC)}, {s(sJJ)}, 1
    s_lshl3_add_u32 {s(sC)}, {s(sX)}, {s(sC)}
    s_lshl_b32 {s(sD)}, {s(sC)}, 8
    s_add_u32 {s(sB)}, {s(sB)}, {s(sD)}
    s_add_u32 {s(sB)}, {s(sB)}, {WS_PART}
    v_lshlrev_b32 {v(vT)}, 18, {v(vG)}
    v_lshl_add_u32 {v(vT)}, {v(vC16)}, 4, {v(vT)}
    v_add_u32 {v(vA0)}, {s(sB)}, {v(vT)}
    """)
    OUTP = 112
    for r in range(4):
        for q in range(4):
            A.i(f"v_cvt_pk_bf16_f32 {v(OUTP + 4 * r + q)}, {v(ACC + 8 * q + r)}, {v(ACC + 8 * q + 4 + r)}")
        A.i(f"global_store_dwordx4 {v(vA0)}, {v(OUTP + 4 * r, 4)}, {s(pWS, 2)} sc1")
        if r < 3:
            A.i(f"v_add_u32 {v(vA0)}, 0x10000, {v(vA0)}")
    A(f"""
    s_lshl4_add_u32 {s(sB)}, {s(sX)}, {s(sJJ)}
    s_lshl2_add_u32 {s(sB)}, {s(sB)}, {s(sW)}
    s_lshl_b32 {s(sB)}, {s(sB)}, 8
    s_add_u32 {s(sB)}, {s(sB)}, {WS_HDR}
    v_lshl_add_u32 {v(vA1)}, {v(vC16)}, 4, {s(sB)}
    v_mov_b32 {v(HD + 1)}, {v(LL)}
    v_mov_b32 {v(HD + 2)}, {s(sT)}
    v_mov_b32 {v(HD + 3)}, {s(sT)}
    """)
    vHA, vDA, vR1, vW2, vR2, vCP = 20, 21, 22, 23, 24, 25
    A(f"""
    v_lshrrev_b32 {v(vT)}, 2, {v(vC16)}
    v_add_u32 {v(vT + 1)}, {s(sW)}, {v(vT)}
    v_and_b32 {v(vT + 1)}, 3, {v(vT + 1)}
    v_and_b32 {v(vT + 4)}, 3, {v(vL)}
    v_lshl_add_u32 {v(vT + 1)}, {v(vT + 1)}, 2, {v(vT + 4)}
    v_lshl_add_u32 {v(vT + 1)}, {v(vT + 1)}, 2, {v(vG)}
    s_lshr_b32 {s(sB)}, {s(sH)}, 4
    s_and_b32 {s(sC)}, {s(sJJ)}, 3
    s_lshl2_add_u32 {s(sB)}, {s(sB)}, {s(sC)}
    s_lshl_b32 {s(sB)}, {s(sB)}, 8
    s_and_b32 {s(sD)}, {s(sH)}, 15
    s_lshl4_add_u32 {s(sB)}, {s(sD)}, {s(sB)}
    s_add_u32 {s(sB)}, {s(sB)}, {WS_HDR}
    v_lshl_add_u32 {v(vHA)}, {v(vT + 1)}, 11, {s(sB)}
    s_lshl2_add_u32 {s(sC)}, {s(sH)}, {s(sC)}
    s_lshl2_add_u32 {s(sB)}, {s(sC)}, {s(sW)}
    s_lshl_b32 {s(sB)}, {s(sB)}, 12
    s_add_u32 {s(sB)}, {s(sB)}, {WS_PART}
    v_lshl_add_u32 {v(vDA)}, {v(vL)}, 4, {s(sB)}
    v_and_b32 {v(vT + 1)}, 1, {v(vL)}
    v_lshl_add_u32 {v(vT + 1)}, {v(vT + 1)}, 4, {v(vG)}
    v_lshlrev_b32 {v(vT + 1)}, 4, {v(vT + 1)}
    v_lshl_add_u32 {v(vT + 1)}, {v(vT)}, 10, {v(vT + 1)}
    s_lshl_b32 {s(sB)}, {s(sW)}, 6
    s_add_u32 {s(sB)}, {s(sB)}, {L_RED2}
    v_add_u32 {v(vR1)}, {s(sB)}, {v(vT + 1)}
    v_add_u32 {v(vW2)}, {L_RED2}, {v(vRW)}
    s_and_b32 {s(sB)}, {s(sW)}, 1
    s_lshl_b32 {s(sB)}, {s(sB)}, 4
    v_add_u32 {v(vT + 1)}, {s(sB)}, {v(vO)}
    s_lshl_b32 {s(sC)}, {s(sC)}, 9
    s_add_u32 {s(sC)}, {s(sC)}, {WS_CP}
    v_lshl_add_u32 {v(vCP)}, {v(vT + 1)}, 4, {s(sC)}
    v_and_b32 {v(vT + 4)}, 1, {v(vT + 1)}
    v_lshrrev_b32 {v(vT + 1)}, 1, {v(vT + 1)}
    v_lshl_add_u32 {v(vT + 1)}, {v(vT + 4)}, 4, {v(vT + 1)}
    v_lshlrev_b32 {v(vT + 1)}, 4, {v(vT + 1)}
    v_lshl_add_u32 {v(vT + 1)}, {v(vT)}, 10, {v(vT + 1)}
    v_add_u32 {v(vR2)}, {L_RED2 + 4096}, {v(vT + 1)}
    s_waitcnt vmcnt(0)
    s_mov_b64 exec, 0xffff
    global_store_dwordx4 {v(vA1)}, {v(HD, 4)}, {s(pWS, 2)} sc1
    s_mov_b64 exec, -1
    """)
    stamp(10)
    H = 32

    def ld_h():
        A.i(f"global_load_dwordx4 {v(H, 4)}, {v(vHA)}, {s(pWS, 2)} sc1")
    poll("hdr", ld_h, None, None, full_tag_reg=H + 2)
    stamp(11)
    PD = 80
    for t in range(4):
        A.i(f"global_load_dwordx4 {v(PD + 4 * t, 4)}, {v(vDA)}, {s(pWS, 2)} offset:{1024 * t} sc1")
    A.i(f"v_mov_b32 {v(36)}, {v(H)}")
    row_allreduce("v_max_f32", [36])
    cross_rows("v_max_f32", [36], 37)
    A(f"""
    v_sub_f32 {v(36)}, {v(H)}, {v(36)}
    v_exp_f32 {v(36)}, {v(36)}
    v_mul_f32 {v(38)}, {v(36)}, {v(H + 1)}
    v_cvt_pk_bf16_f32 {v(36)}, {v(36)}, {v(36)}
    """)
    row_allreduce("v_add_f32", [38])
    cross_rows("v_add_f32", [38], 37)
    A.i(f"v_rcp_f32 {v(38)}, {v(38)}")
    D = 40
    AT = 48
    ms = [sel_mfma(D, 36, f"row_newbcast:{t}", v(PD + 4 * t, 4), AT + 4 * t, t == 0) for t in range(4)]
    for t in range(4):
        A.i(f"s_waitcnt vmcnt({3 - t})")
        A.i(ms[t])
    stamp(12)
    R0 = 44
    A(f"""
    ds_write_b128 {v(vW2)}, {v(D, 4)}
    s_waitcnt lgkmcnt(0)
    s_barrier
    ds_read_b128 {v(R0, 4)}, {v(vR1)}
    s_waitcnt lgkmcnt(0)
    """)
    for ror in (4, 8):
        for r in range(4):
            A.i(f"v_add_f32_dpp {v(R0 + r)}, {v(R0 + r)}, {v(R0 + r)} row_ror:{ror} {DPPALL}")
    for r in range(4):
        A.i(f"v_mul_f32 {v(R0 + r)}, {v(R0 + r)}, {v(38)}")
    for r in range(4):
        A.i(f"v_cvt_pk_bf16_f32 {v(R0 + r)}, {v(R0 + r)}, {v(R0 + r)}")
    sel_chain(D, [(R0 + (u & 3), f"quad_perm:[{u >> 2},{u >> 2},{u >> 2},{u >> 2}]", v(WUV + 4 * u, 4)) for u in range(8)], AT)
    A(f"""
    ds_write_b128 {v(vW2)}, {v(D, 4)} offset:4096
    s_waitcnt lgkmcnt(0)
    s_barrier
    ds_read_b128 {v(R0, 4)}, {v(vR2)}
    s_lshr_b32 {s(sB)}, {s(sW)}, 1
    s_lshl_b32 {s(sB)}, {s(sB)}, 5
    s_mov_b32 {s(sC)}, 0x000f000f
    s_mov_b32 {s(sD)}, 0
    s_lshl_b64 {s(sC, 2)}, {s(sC, 2)}, {s(sB)}
    s_waitcnt lgkmcnt(0)
    """)
    for ror in (4, 8):
        for r in range(4):
            A.i(f"v_add_f32_dpp {v(R0 + r)}, {v(R0 + r)}, {v(R0 + r)} row_ror:{ror} {DPPALL}")
    tag4(R0, R0)
    A(f"""
    s_mov_b64 exec, {s(sC, 2)}
    global_store_dwordx4 {v(vCP)}, {v(R0, 4)}, {s(pWS, 2)} sc1
    """)
    stamp(13)
    finish_stamps()
    A.label("L_end")
    A.i("s_endpgm")
    A.label("L_code_end")

    head = open("sequential_preLN__compressed_kv_cla__moe_arch_mod__decode.s.ref").read().split("\n")
    hdr = [ln for ln in head if ln.startswith(";") and "@launch" not in ln and "Override launch" not in ln and "grid=ceil" not in ln]
    out = "\n".join(hdr) + "\n"
    out += f"; @launch grid=(256,1,1) block=(256,1,1) lds={L_TOTAL}\n"
    out += f""".amdgcn_target "amdgcn-amd-amdhsa--gfx950"
.text
.globl {NAME}
.p2align 8
.type {NAME},@function
"""
    out += A.finish()
    out += f""".section .rodata,"a"
.p2align 6
.amdhsa_kernel {NAME}
  .amdhsa_next_free_vgpr 512
  .amdhsa_next_free_sgpr 102
  .amdhsa_accum_offset 256
  .amdhsa_group_segment_fixed_size 0
  .amdhsa_kernarg_size 112
  .amdhsa_user_sgpr_count 2
  .amdhsa_user_sgpr_kernarg_segment_ptr 1
  .amdhsa_system_sgpr_workgroup_id_x 1
.end_amdhsa_kernel
"""
    return out


if __name__ == "__main__":
    open("k1.s", "w").write(build(False))
    open("k1_st.s", "w").write(build(True))
```

```python
import sys
from asmlib import Asm, v, s, a_

NAME = "sequential_preLN__compressed_kv_cla__moe_arch_mod__decode_kernel"

WS_QP = 0x1000
WS_QL = 0x20000
WS_HDR = 0x40000
WS_CP = 0x60000
WS_OP = 0x70000
WS_YP = 0x80000
WS_PART = 0x100000
WS_STAMP = 0x400000

PITCH = 1056
L_QL = 128 * PITCH
L_PB = L_QL + 16 * PITCH
L_M = L_PB + 4096
L_TOTAL = L_M + 256
L_RED = L_PB
L_RED2 = L_QL
L_H = 0
L_ST = 2048

pX, pCKV, pWQ, pWUK, pWUV, pWO, pWR, pWG, pWU, pWD, pOUT, pDBG, pWS = 4, 6, 8, 10, 12, 14, 18, 20, 22, 24, 26, 28, 30
sX, sJ, sW, sH, sJJ = 32, 33, 34, 35, 36
sA, sB, sC, sD = 38, 39, 48, 49
sT = 40
sE, sCNT = 45, 47
sPC = 50
sST = 64
POLL_LIMIT = 200000

DPPALL = "row_mask:0xf bank_mask:0xf"


def build(stamps=False, opt=None):
    opt = opt or {}
    A = Asm()
    nst = [0]

    amp = opt.get("amp")

    def stamp(k):
        if stamps or (amp and k in amp[:2]):
            A.i(f"s_memrealtime {s(sST + 2 * k, 2)}")

    def setexec(lo, hi):
        A.i(f"s_mov_b32 exec_lo, {lo:#x}")
        A.i(f"s_mov_b32 exec_hi, {hi:#x}")

    def execall():
        A.i("s_mov_b64 exec, -1")

    vL, vC16, vG, vFF = 1, 2, 3, 4
    vM = 8
    vRW, vRR = 5, 6
    vT = 12

    def row_allreduce(op, regs):
        for r in (8, 4, 2, 1):
            for x in regs:
                A.i(f"{op}_dpp {v(x)}, {v(x)}, {v(x)} row_ror:{r} {DPPALL}")

    def cross_rows(op, regs, tmp):
        for sw in ("v_permlane16_swap_b32", "v_permlane32_swap_b32"):
            for k, x in enumerate(regs):
                A.i(f"v_mov_b32 {v(tmp + k)}, {v(x)}")
            for k, x in enumerate(regs):
                A.i(f"{sw} {v(x)}, {v(tmp + k)}")
            for k, x in enumerate(regs):
                A.i(f"{op} {v(x)}, {v(x)}, {v(tmp + k)}")

    def tag4(dst, src):
        for r in range(4):
            A.i(f"v_bfi_b32 {v(dst + r)}, {v(vFF)}, {s(sT + r)}, {v(src + r)}")

    def poll(name, loads, regs, acc, full_tag_reg=None, sleep=0):
        A.i(f"s_mov_b32 {s(sCNT)}, {POLL_LIMIT}")
        A.label(f"L_poll_{name}")
        if sleep:
            A.i(f"s_sleep {sleep}")
        loads()
        A.i("s_waitcnt vmcnt(0)")
        if full_tag_reg is not None:
            A.i(f"v_cmp_ne_u32 vcc, {s(sT)}, {v(full_tag_reg)}")
        else:
            first = True
            for g in regs:
                for r in range(4):
                    if first:
                        A.i(f"v_xor_b32 {v(acc)}, {s(sT + r)}, {v(g + r)}")
                        first = False
                    else:
                        A.i(f"v_bitop3_b32 {v(acc)}, {v(acc)}, {v(g + r)}, {s(sT + r)} bitop3:0xf6")
            A.i(f"v_and_b32 {v(acc)}, {v(acc)}, {v(vFF)}")
            A.i(f"v_cmp_ne_u32 vcc, 0, {v(acc)}")
        A.i(f"s_sub_u32 {s(sCNT)}, {s(sCNT)}, 1")
        A.i(f"s_cbranch_scc1 L_pollx_{name}")
        A.i(f"s_cbranch_vccnz L_poll_{name}")
        A.label(f"L_pollx_{name}")

    def sel_mfma(D, W, dppmod, B, Atmp, first):
        for q in range(4):
            if dppmod:
                A.i(f"v_and_b32_dpp {v(Atmp + q)}, {v(W)}, {v(vM + q)} {dppmod} {DPPALL}")
            else:
                A.i(f"v_and_b32 {v(Atmp + q)}, {v(W)}, {v(vM + q)}")
        return f"v_mfma_f32_16x16x32_bf16 {v(D, 4)}, {v(Atmp, 4)}, {B}, {'0' if first else v(D, 4)}"

    def sel_chain(D, items, Atmp, waits=None):
        pend = None
        for k, (W, mod, B) in enumerate(items):
            m = sel_mfma(D, W, mod, B, Atmp + 4 * (k & 1), k == 0)
            if pend:
                if waits and waits[k - 1] is not None:
                    A.i(waits[k - 1])
                A.i(pend)
            pend = m
        if waits and waits[-1] is not None:
            A.i(waits[-1])
        A.i(pend)

    def finish_stamps():
        if not stamps:
            return
        A.i("s_waitcnt lgkmcnt(0)")
        execall()
        A.i(f"v_mov_b32 {v(20)}, 0")
        for k in range(16):
            A.i(f"v_writelane_b32 {v(20)}, {s(sST + 2 * k)}, {k}")
        A.i(f"s_lshl_b32 {s(sA)}, s2, 2")
        A.i(f"s_add_u32 {s(sA)}, {s(sA)}, {s(sW)}")
        A.i(f"s_lshl_b32 {s(sA)}, {s(sA)}, 6")
        A.i(f"s_add_u32 {s(sA)}, {s(sA)}, {WS_STAMP}")
        A.i(f"v_lshl_add_u32 {v(21)}, {v(vL)}, 2, {s(sA)}")
        setexec(0xFFFF, 0)
        A.i(f"global_store_dword {v(21)}, {v(20)}, {s(pWS, 2)}")

    A.label(NAME)
    A(f"""
    s_cmp_ge_u32 s2, 256
    s_cbranch_scc1 L_end
    s_load_dwordx16 s[4:19], s[0:1], 0
    s_load_dwordx8 s[20:27], s[0:1], 64
    s_load_dwordx4 s[28:31], s[0:1], 96
    """)
    if stamps:
        for k in range(16):
            A.i(f"s_mov_b32 {s(sST + 2 * k)}, 0")
    stamp(0)
    vXA, vX4, vWQ = 20, 24, 28
    vRole = 44
    vA0, vA1 = 76, 77
    A(f"""
    s_getpc_b64 {s(sPC, 2)}
    L_pc:
    v_lshrrev_b32 {v(vT)}, 6, v0
    v_and_b32 {v(vL)}, 63, v0
    s_and_b32 {s(sX)}, s2, 7
    s_lshr_b32 {s(sJ)}, s2, 3
    v_readfirstlane_b32 {s(sW)}, {v(vT)}
    s_lshr_b32 {s(sJJ)}, {s(sJ)}, 1
    s_lshr_b32 {s(sA)}, {s(sJ)}, 3
    s_lshl2_add_u32 {s(sH)}, {s(sX)}, {s(sA)}
    s_lshl_b32 {s(sA)}, {s(sJ)}, 10
    v_lshl_add_u32 {v(vT)}, v0, 2, {s(sA)}
    v_min_u32 {v(vT)}, L_code_end - L_pc - 4, {v(vT)}
    global_load_dword {v(vT + 1)}, {v(vT)}, {s(sPC, 2)}
    s_and_b32 {s(sA)}, {s(sJJ)}, 3
    s_lshl2_add_u32 {s(sA)}, {s(sA)}, {s(sW)}
    s_lshl_b32 {s(sA)}, {s(sA)}, 5
    v_lshrrev_b32 {v(vT + 2)}, 3, {v(vL)}
    v_and_b32 {v(vT + 3)}, 7, {v(vL)}
    v_lshl_add_u32 {v(vT + 4)}, {v(vT + 2)}, 2, {s(sA)}
    s_and_b32 {s(sB)}, {s(sJ)}, 1
    s_lshl1_add_u32 {s(sB)}, {s(sH)}, {s(sB)}
    s_lshl_b32 {s(sB)}, {s(sB)}, 7
    v_lshl_add_u32 {v(vT + 5)}, {v(vT + 3)}, 4, {s(sB)}
    v_lshl_add_u32 {v(vA0)}, {v(vT + 4)}, 13, {v(vT + 5)}
    v_lshlrev_b32 {v(vT + 4)}, 1, {v(vT + 4)}
    v_lshlrev_b32 {v(vRW)}, 4, {v(vL)}
    v_and_b32 {v(vC16)}, 15, {v(vL)}
    v_lshrrev_b32 {v(vG)}, 4, {v(vL)}
    v_mov_b32 {v(vA1)}, 0
    s_waitcnt lgkmcnt(0)
    s_load_dword {s(sE)}, {s(pWS, 2)}, 0
    global_load_dwordx4 {v(vXA, 4)}, {v(vRW)}, {s(pX, 2)}
    global_load_dwordx2 {v(vX4, 2)}, {v(vT + 4)}, {s(pX, 2)}
    """)
    for u in range(4):
        A.i(f"global_load_dwordx4 {v(vWQ + 4 * u, 4)}, {v(vA0)}, {s(pWQ, 2)} nt")
        if u < 3:
            A.i(f"v_add_u32 {v(vA0)}, 0x2000, {v(vA0)}")
    A(f"""
    s_bitcmp1_b32 {s(sJ)}, 0
    s_cbranch_scc1 L_early_A
    v_lshl_add_u32 {v(vT + 4)}, {v(vG)}, 3, {s(sA)}
    s_lshl_b32 {s(sB)}, {s(sH)}, 8
    v_lshl_add_u32 {v(vT + 5)}, {v(vC16)}, 4, {s(sB)}
    v_lshl_add_u32 {v(vA0)}, {v(vT + 4)}, 13, {v(vT + 5)}
    """)
    for u in range(8):
        A.i(f"global_load_dwordx4 {v(vRole + 4 * u, 4)}, {v(vA0)}, {s(pWUK, 2)} nt")
        if u < 7:
            A.i(f"v_add_u32 {v(vA0)}, 0x2000, {v(vA0)}")
    A.i("s_branch L_f1")
    A.label("L_early_A")
    A(f"""
    s_lshl4_add_u32 {s(sB)}, {s(sX)}, {s(sJJ)}
    s_lshl2_add_u32 {s(sB)}, {s(sB)}, {s(sW)}
    s_lshl_b32 {s(sB)}, {s(sB)}, 14
    v_add_u32 {v(vA1)}, {s(sB)}, {v(vRW)}
    s_mul_i32 m0, {s(sW)}, {16 * PITCH}
    """)

    def ckv_rows(i0, i1):
        for i in range(i0, i1):
            A.i(f"global_load_lds_dwordx4 {v(vA1)}, {s(pCKV, 2)} offset:{(i & 3) * 1024} nt")
            if (i & 3) == 3:
                A.i(f"s_add_u32 m0, m0, {PITCH + 3072}")
                A.i(f"v_add_u32 {v(vA1)}, 0x1000, {v(vA1)}")
            else:
                A.i(f"s_add_u32 m0, m0, {PITCH - 1024}")

    ckv_rows(0, 8)
    A.label("L_f1")
    stamp(1)
    A(f"""
    v_and_b32 {v(vT + 4)}, 1, {v(vL)}
    v_lshlrev_b32 {v(vT + 4)}, 4, {v(vT + 4)}
    v_mov_b32 {v(vT + 5)}, 0xffff
    v_lshlrev_b32 {v(vT + 4)}, {v(vT + 4)}, {v(vT + 5)}
    v_lshrrev_b32 {v(vT + 5)}, 1, {v(vT + 3)}
    v_mov_b32 {v(vFF)}, 0xff
    """)
    for q in range(4):
        A.i(f"v_cmp_eq_u32 vcc, {q}, {v(vT + 5)}")
        A.i(f"v_cndmask_b32 {v(vM + q)}, 0, {v(vT + 4)}, vcc")
    A(f"""
    s_lshl_b32 {s(sB)}, {s(sW)}, 10
    v_add_u32 {v(vRW)}, {s(sB)}, {v(vRW)}
    """)
    vO = 7
    vQ = 78
    A(f"""
    v_and_b32 {v(vT + 4)}, 3, {v(vL)}
    v_lshl_add_u32 {v(vO)}, {v(vG)}, 2, {v(vT + 4)}
    v_lshrrev_b32 {v(vT + 5)}, 2, {v(vC16)}
    v_and_b32 {v(vT + 6)}, 8, {v(vO)}
    v_add_u32 {v(vT + 6)}, {v(vT + 6)}, {v(vO)}
    v_lshlrev_b32 {v(vT + 6)}, 4, {v(vT + 6)}
    v_lshl_add_u32 {v(vRR)}, {v(vT + 5)}, 10, {v(vT + 6)}
    v_add_u32 {v(vRR)}, {L_RED}, {v(vRR)}
    v_add_u32 {v(vT + 7)}, {L_RED}, {v(vRW)}
    s_and_b32 {s(sB)}, {s(sJ)}, 1
    s_lshl1_add_u32 {s(sB)}, {s(sH)}, {s(sB)}
    s_and_b32 {s(sC)}, {s(sJJ)}, 3
    s_lshl2_add_u32 {s(sB)}, {s(sB)}, {s(sC)}
    s_lshl_b32 {s(sB)}, {s(sB)}, 8
    s_add_u32 {s(sB)}, {s(sB)}, {WS_QP}
    v_lshl_add_u32 {v(vQ)}, {v(vO)}, 4, {s(sB)}
    s_waitcnt lgkmcnt(0)
    s_mul_i32 {s(sT)}, {s(sE)}, 0x9e3779b1
    s_add_u32 {s(sT)}, {s(sT)}, 0x7f4a7c15
    s_lshr_b32 {s(sT + 1)}, {s(sT)}, 8
    s_lshr_b32 {s(sT + 2)}, {s(sT)}, 16
    s_lshr_b32 {s(sT + 3)}, {s(sT)}, 24
    s_waitcnt vmcnt(12)
    """)
    stamp(2)
    xf = 80
    x4f = 88
    for k in range(4):
        A.i(f"v_lshlrev_b32 {v(xf + 2 * k)}, 16, {v(vXA + k)}")
        A.i(f"v_and_b32 {v(xf + 2 * k + 1)}, 0xffff0000, {v(vXA + k)}")
    sm = 92
    A.i(f"v_add_f32 {v(sm)}, {v(xf)}, {v(xf + 1)}")
    for k in range(2, 8):
        A.i(f"v_add_f32 {v(sm)}, {v(sm)}, {v(xf + k)}")
    row_allreduce("v_add_f32", [sm])
    for k in range(2):
        A.i(f"v_lshlrev_b32 {v(x4f + 2 * k)}, 16, {v(vX4 + k)}")
        A.i(f"v_and_b32 {v(x4f + 2 * k + 1)}, 0xffff0000, {v(vX4 + k)}")
    cross_rows("v_add_f32", [sm], 93)
    A.i(f"v_mul_f32 {v(sm)}, 0x3b000000, {v(sm)}")
    for k in range(8):
        A.i(f"v_sub_f32 {v(xf + k)}, {v(xf + k)}, {v(sm)}")
    sq = 94
    A.i(f"v_mul_f32 {v(sq)}, {v(xf)}, {v(xf)}")
    for k in range(1, 8):
        A.i(f"v_fmac_f32 {v(sq)}, {v(xf + k)}, {v(xf + k)}")
    row_allreduce("v_add_f32", [sq])
    for k in range(4):
        A.i(f"v_sub_f32 {v(x4f + k)}, {v(x4f + k)}, {v(sm)}")
    cross_rows("v_add_f32", [sq], 93)
    A(f"""
    v_mov_b32 {v(93)}, 0x3727c5ac
    v_fmac_f32 {v(93)}, 0x3b000000, {v(sq)}
    v_rsq_f32 {v(93)}, {v(93)}
    v_mul_f32 {v(93)}, 0x3e0293ee, {v(93)}
    """)
    for k in range(4):
        A.i(f"v_mul_f32 {v(x4f + k)}, {v(x4f + k)}, {v(93)}")
    for k in range(4):
        A.i(f"v_cvt_pk_bf16_f32 {v(x4f + k)}, {v(x4f + k)}, {v(x4f + k)}")
    D = 96
    sel_chain(D, [(x4f + u, None, v(vWQ + 4 * u, 4)) for u in range(4)], 100,
              waits=[f"s_waitcnt vmcnt({11 - u})" for u in range(4)])
    stamp(3)
    R0, R1 = 108, 112
    A(f"""
    ds_write_b128 {v(vT + 7)}, {v(D, 4)}
    s_waitcnt lgkmcnt(0)
    s_barrier
    ds_read_b128 {v(R0, 4)}, {v(vRR)}
    ds_read_b128 {v(R1, 4)}, {v(vRR)} offset:{40 * 16}
    s_lshl_b32 {s(sB)}, {s(sW)}, 4
    s_lshl_b64 {s(sC, 2)}, 15, {s(sB)}
    s_waitcnt lgkmcnt(0)
    """)
    for r in range(4):
        A.i(f"v_add_f32 {v(R0 + r)}, {v(R0 + r)}, {v(R1 + r)}")
    for ror in (4, 8):
        for r in range(4):
            A.i(f"v_add_f32_dpp {v(R0 + r)}, {v(R0 + r)}, {v(R0 + r)} row_ror:{ror} {DPPALL}")
    tag4(R0, R0)
    A(f"""
    s_mov_b64 exec, {s(sC, 2)}
    global_store_dwordx4 {v(vQ)}, {v(R0, 4)}, {s(pWS, 2)} sc1
    s_mov_b64 exec, -1
    """)
    stamp(4)
    A(f"""
    s_bitcmp1_b32 {s(sJ)}, 0
    s_cbranch_scc1 L_roleA
    """)

    Q = 20
    A(f"""
    s_lshl_b32 {s(sB)}, {s(sH)}, 11
    s_add_u32 {s(sB)}, {s(sB)}, {WS_QP}
    v_lshrrev_b32 {v(vT)}, 3, {v(vC16)}
    v_lshl_add_u32 {v(vT)}, {v(vT)}, 2, {v(vG)}
    v_lshlrev_b32 {v(vT)}, 8, {v(vT)}
    v_lshl_add_u32 {v(vT)}, {v(vT + 3)}, 4, {v(vT)}
    v_add_u32 {v(vA0)}, {s(sB)}, {v(vT)}
    s_lshl_b32 {s(sB)}, {s(sH)}, 9
    s_add_u32 {s(sB)}, {s(sB)}, {s(sA)}
    s_lshl_b32 {s(sB)}, {s(sB)}, 2
    s_add_u32 {s(sB)}, {s(sB)}, {WS_QL}
    v_lshl_add_u32 {v(vQ)}, {v(vT + 2)}, 4, {s(sB)}
    """)

    def ld_q():
        A.i(f"global_load_dwordx4 {v(Q, 4)}, {v(vA0)}, {s(pWS, 2)} sc1")
        A.i(f"global_load_dwordx4 {v(Q + 4, 4)}, {v(vA0)}, {s(pWS, 2)} offset:128 sc1")
    poll("q", ld_q, [Q, Q + 4], 28)
    stamp(5)
    for j in range(4):
        A.i(f"v_permlane32_swap_b32 {v(Q + j)}, {v(Q + 4 + j)}")
    for j in range(4):
        A.i(f"v_add_f32 {v(Q + j)}, {v(Q + j)}, {v(Q + 4 + j)}")
    for j in range(2):
        A.i(f"v_permlane16_swap_b32 {v(Q + j)}, {v(Q + 2 + j)}")
    for j in range(2):
        A.i(f"v_add_f32 {v(Q + j)}, {v(Q + j)}, {v(Q + 2 + j)}")
    B = 28
    A(f"""
    v_cvt_pk_bf16_f32 {v(B)}, {v(Q)}, {v(Q + 1)}
    v_cvt_pk_bf16_f32 {v(B + 1)}, {v(Q)}, {v(Q + 1)}
    v_permlane16_swap_b32 {v(B)}, {v(B + 1)}
    v_mov_b32 {v(B + 2)}, {v(B)}
    v_mov_b32 {v(B + 3)}, {v(B + 1)}
    v_permlane32_swap_b32 {v(B)}, {v(B + 2)}
    v_permlane32_swap_b32 {v(B + 1)}, {v(B + 3)}
    """)
    acc = 32
    for q in range(4):
        for u in range(8):
            A.i(f"v_dot2_f32_bf16 {v(acc + u)}, {v(vRole + 4 * u + q)}, {v(B + q)}, {'0' if q == 0 else v(acc + u)}")
    X = 40
    for r in range(4):
        A.i(f"v_add_f32_dpp {v(X + r)}, {v(acc + r)}, {v(acc + r)} row_ror:8 row_mask:0xf bank_mask:0x3")
    for r in range(4):
        A.i(f"v_add_f32_dpp {v(X + r)}, {v(acc + 4 + r)}, {v(acc + 4 + r)} row_ror:8 row_mask:0xf bank_mask:0xc")
    for mod in ("row_half_mirror", "quad_perm:[1,0,3,2]", "quad_perm:[2,3,0,1]"):
        for r in range(4):
            A.i(f"v_add_f32_dpp {v(X + r)}, {v(X + r)}, {v(X + r)} {mod} {DPPALL}")
    tag4(X, X)
    setexec(0x01010101, 0x01010101)
    A.i(f"global_store_dwordx4 {v(vQ)}, {v(X, 4)}, {s(pWS, 2)} sc1")
    execall()
    stamp(6)
    vPH, vK = vT + 4, vT + 5
    A(f"""
    v_bfe_u32 {v(vPH)}, {v(vL)}, 2, 1
    v_and_b32 {v(vK)}, 3, {v(vL)}
    s_cmp_ge_u32 {s(sJJ)}, 8
    s_cbranch_scc1 L_roleFFN
    """)

    def ph_reduce(dst, src):
        for r in range(4):
            A.i(f"v_add_f32_dpp {v(dst + r)}, {v(src + r)}, {v(src + r)} row_shl:4 row_mask:0xf bank_mask:0x5")
        for r in range(4):
            A.i(f"v_add_f32_dpp {v(dst + r)}, {v(src + r)}, {v(src + r)} row_shr:4 row_mask:0xf bank_mask:0xa")

    WO = 64
    A(f"""
    s_lshl2_add_u32 {s(sB)}, {s(sX)}, {s(sW)}
    s_lshl_b32 {s(sC)}, {s(sB)}, 17
    s_lshl_b32 {s(sD)}, {s(sJJ)}, 7
    s_add_u32 {s(sC)}, {s(sC)}, {s(sD)}
    v_lshlrev_b32 {v(vT)}, 14, {v(vT + 2)}
    v_lshl_add_u32 {v(vT)}, {v(vT + 3)}, 4, {v(vT)}
    v_add_u32 {v(44)}, {s(sC)}, {v(vT)}
    """)
    for u in range(16):
        A.i(f"global_load_dwordx4 {v(WO + 4 * u, 4)}, {v(44)}, {s(pWO, 2)} offset:{(u & 3) * 1024} nt")
        if (u & 3) == 3 and u < 15:
            A.i(f"v_add_u32 {v(44)}, 0x1000, {v(44)}")
        if u in opt.get("o_gates", ()):
            A.i("s_waitcnt vmcnt(0)")
    A(f"""
    s_lshl_b32 {s(sB)}, {s(sB)}, 11
    s_add_u32 {s(sB)}, {s(sB)}, {WS_CP}
    v_lshlrev_b32 {v(vT)}, 9, {v(vPH)}
    v_lshl_add_u32 {v(vT)}, {v(vT + 2)}, 6, {v(vT)}
    v_lshl_add_u32 {v(vT)}, {v(vK)}, 4, {v(vT)}
    v_add_u32 {v(44)}, {s(sB)}, {v(vT)}
    s_lshl_b32 {s(sB)}, {s(sX)}, 11
    s_lshl_b32 {s(sD)}, {s(sJJ)}, 8
    s_add_u32 {s(sB)}, {s(sB)}, {s(sD)}
    s_add_u32 {s(sB)}, {s(sB)}, {WS_OP}
    v_lshl_add_u32 {v(45)}, {v(vO)}, 4, {s(sB)}
    v_and_b32 {v(vT)}, 1, {v(vO)}
    v_lshrrev_b32 {v(vT + 1)}, 1, {v(vO)}
    v_lshl_add_u32 {v(vT)}, {v(vT)}, 4, {v(vT + 1)}
    v_lshrrev_b32 {v(vT + 1)}, 2, {v(vC16)}
    v_lshlrev_b32 {v(vT + 1)}, 10, {v(vT + 1)}
    v_lshl_add_u32 {v(vRR)}, {v(vT)}, 4, {v(vT + 1)}
    s_lshl_b32 {s(sB)}, {s(sW)}, 4
    s_lshl_b64 {s(sC, 2)}, 15, {s(sB)}
    s_waitcnt vmcnt(0)
    """)
    stamp(7)
    G = 20

    def ld_cp():
        A.i(f"global_load_dwordx4 {v(G, 4)}, {v(44)}, {s(pWS, 2)} sc1")
        A.i(f"global_load_dwordx4 {v(G + 4, 4)}, {v(44)}, {s(pWS, 2)} offset:1024 sc1")
    poll("cp", ld_cp, [G, G + 4], 28, sleep=opt.get("sleep", 0))
    stamp(8)
    for r in range(4):
        A.i(f"v_add_f32 {v(G + r)}, {v(G + r)}, {v(G + 4 + r)}")
    ph_reduce(28, G)
    for r in range(4):
        A.i(f"v_cvt_pk_bf16_f32 {v(28 + r)}, {v(28 + r)}, {v(28 + r)}")
    D = 32
    sel_chain(D, [(28 + (u & 3), f"quad_perm:[{u >> 2},{u >> 2},{u >> 2},{u >> 2}]", v(WO + 4 * u, 4)) for u in range(16)], 36)
    R0, R1 = 48, 52
    A(f"""
    ds_write_b128 {v(vRW)}, {v(D, 4)}
    s_waitcnt lgkmcnt(0)
    s_barrier
    ds_read_b128 {v(R0, 4)}, {v(vRR)}
    ds_read_b128 {v(R1, 4)}, {v(vRR)} offset:{40 * 16}
    s_waitcnt lgkmcnt(0)
    """)
    for r in range(4):
        A.i(f"v_add_f32 {v(R0 + r)}, {v(R0 + r)}, {v(R1 + r)}")
    for ror in (4, 8):
        for r in range(4):
            A.i(f"v_add_f32_dpp {v(R0 + r)}, {v(R0 + r)}, {v(R0 + r)} row_ror:{ror} {DPPALL}")
    tag4(R0, R0)
    A(f"""
    s_mov_b64 exec, {s(sC, 2)}
    global_store_dwordx4 {v(45)}, {v(R0, 4)}, {s(pWS, 2)} sc1
    """)
    stamp(9)
    finish_stamps()
    A.i("s_endpgm")

    A.label("L_roleFFN")
    sFI = 37
    A(f"""
    s_sub_u32 {s(sFI)}, {s(sJJ)}, 8
    s_lshl3_add_u32 {s(sFI)}, {s(sFI)}, {s(sX)}
    s_cmp_ge_u32 {s(sFI)}, 43
    s_cbranch_scc1 L_idle
    """)
    WGU = 64
    WD = 128
    vXH = 160
    vWR = 166
    A(f"""
    s_lshl_b32 {s(sB)}, {s(sW)}, 7
    v_lshl_add_u32 {v(vT)}, {v(vT + 2)}, 4, {s(sB)}
    v_lshl_add_u32 {v(vT + 1)}, {v(vK)}, 2, {v(vT)}
    v_lshlrev_b32 {v(46)}, 1, {v(vT + 1)}
    global_load_dwordx2 {v(vXH, 2)}, {v(46)}, {s(pX, 2)}
    v_lshlrev_b32 {v(47)}, 4, {v(vL)}
    global_load_dwordx4 {v(vWR, 4)}, {v(47)}, {s(pWR, 2)}
    v_mul_u32_u24 {v(vT)}, 2752, {v(vT)}
    s_lshl_b32 {s(sB)}, {s(sFI)}, 6
    v_lshl_add_u32 {v(48)}, {v(vK)}, 4, {s(sB)}
    v_add_u32 {v(48)}, {v(48)}, {v(vT)}
    v_mov_b32 {v(49)}, 0
    v_cmp_eq_u32 vcc, 0, {v(vPH)}
    v_mov_b32 {v(50)}, {s(pWU)}
    v_mov_b32 {v(51)}, {s(pWU + 1)}
    v_mov_b32 {v(52)}, {s(pWG)}
    v_mov_b32 {v(53)}, {s(pWG + 1)}
    v_cndmask_b32 {v(50)}, {v(50)}, {v(52)}, vcc
    v_cndmask_b32 {v(51)}, {v(51)}, {v(53)}, vcc
    v_lshl_add_u64 {v(48, 2)}, {v(48, 2)}, 0, {v(50, 2)}
    s_mov_b32 {s(sC)}, {2 * 2752}
    s_mov_b32 {s(sD)}, 0
    """)
    for u in range(16):
        A.i(f"global_load_dwordx4 {v(WGU + 4 * u, 4)}, {v(48, 2)}, off offset:{(u & 1) * 2752} nt")
        if (u & 1) and u < 15:
            A.i(f"v_lshl_add_u64 {v(48, 2)}, {v(48, 2)}, 0, {s(sC, 2)}")
        if u in opt.get("f_gates", ()):
            A.i("s_waitcnt vmcnt(0)")
    A(f"""
    s_lshl_b32 {s(sB)}, {s(sFI)}, 15
    s_lshl_b32 {s(sC)}, {s(sW)}, 8
    s_add_u32 {s(sB)}, {s(sB)}, {s(sC)}
    v_lshlrev_b32 {v(vT)}, 13, {v(vG)}
    v_lshl_add_u32 {v(vT)}, {v(vC16)}, 4, {v(vT)}
    v_add_u32 {v(44)}, {s(sB)}, {v(vT)}
    """)
    for u in range(8):
        A.i(f"global_load_dwordx4 {v(WD + 4 * u, 4)}, {v(44)}, {s(pWD, 2)} offset:{(u & 3) * 1024} nt")
        if u == 3:
            A.i(f"v_add_u32 {v(44)}, 0x1000, {v(44)}")
    L_RF = 4096
    A(f"""
    v_lshlrev_b32 {v(46)}, 2, {v(vT + 1)}
    v_lshl_add_u32 {v(44)}, {v(vPH)}, 11, {v(46)}
    v_add_u32 {v(44)}, {WS_OP + 4096}, {v(44)}
    v_add_u32 {v(45)}, 0x2000, {v(44)}
    v_add_u32 {v(vRW)}, {L_RF}, {v(vRW)}
    v_and_b32 {v(vT)}, 1, {v(vL)}
    v_lshlrev_b32 {v(vT)}, 4, {v(vT)}
    v_and_b32 {v(vT + 1)}, 2, {v(vL)}
    v_lshl_add_u32 {v(vT)}, {v(vT + 1)}, 1, {v(vT)}
    v_add_u32 {v(vT)}, {v(vT)}, {v(vG)}
    v_lshrrev_b32 {v(vT + 1)}, 2, {v(vC16)}
    v_lshlrev_b32 {v(vT + 1)}, 10, {v(vT + 1)}
    v_lshl_add_u32 {v(vRR)}, {v(vT)}, 4, {v(vT + 1)}
    v_add_u32 {v(vRR)}, {L_RF}, {v(vRR)}
    s_lshl_b32 {s(sB)}, {s(sFI)}, 11
    s_lshl_b32 {s(sC)}, {s(sW)}, 9
    s_add_u32 {s(sB)}, {s(sB)}, {s(sC)}
    s_add_u32 {s(sB)}, {s(sB)}, {WS_YP}
    v_add_u32 {v(54)}, {s(sB)}, {v(47)}
    s_lshl_b32 {s(sB)}, {s(sW)}, 3
    s_add_u32 {s(sB)}, {s(sB)}, {L_ST}
    v_mov_b32 {v(55)}, {s(sB)}
    v_mov_b32 {v(56)}, 0
    v_mov_b32 {v(28)}, 0x3f803f80
    s_waitcnt vmcnt(8)
    """)
    XF = 162
    for k in range(2):
        A.i(f"v_lshlrev_b32 {v(XF + 2 * k)}, 16, {v(vXH + k)}")
        A.i(f"v_and_b32 {v(XF + 2 * k + 1)}, 0xffff0000, {v(vXH + k)}")
    D = 32
    CS = 170
    R0, R1 = 48, 60

    def gu_reduce(dst):
        A(f"""
        ds_read_b128 {v(dst, 4)}, {v(vRR)}
        ds_read_b128 {v(R1, 4)}, {v(vRR)} offset:{40 * 16}
        """)

    def gu_sum(dst):
        for r in range(4):
            A.i(f"v_add_f32 {v(dst + r)}, {v(dst + r)}, {v(R1 + r)}")
        for ror in (4, 8):
            for r in range(4):
                A.i(f"v_add_f32_dpp {v(dst + r)}, {v(dst + r)}, {v(dst + r)} row_ror:{ror} {DPPALL}")

    for q in range(4):
        A.i(f"v_and_b32 {v(36 + q)}, {v(28)}, {v(vM + q)}")
    for u in range(16):
        A.i(f"v_mfma_f32_16x16x32_bf16 {v(D, 4)}, {v(36, 4)}, {v(WGU + 4 * u, 4)}, {'0' if u == 0 else v(D, 4)}")
    A(f"""
    ds_write_b128 {v(vRW)}, {v(D, 4)}
    s_waitcnt lgkmcnt(0)
    s_barrier
    """)
    gu_reduce(CS + 2)
    CS = CS + 2
    A.i("s_waitcnt lgkmcnt(0)")
    gu_sum(CS)
    A(f"""
    s_barrier
    s_waitcnt vmcnt(0)
    """)
    stamp(7)
    G = 176

    def ld_op():
        A.i(f"global_load_dwordx4 {v(G, 4)}, {v(44)}, {s(pWS, 2)} offset:-4096 sc1")
        A.i(f"global_load_dwordx4 {v(G + 4, 4)}, {v(44)}, {s(pWS, 2)} sc1")
        A.i(f"global_load_dwordx4 {v(G + 8, 4)}, {v(45)}, {s(pWS, 2)} offset:-4096 sc1")
        A.i(f"global_load_dwordx4 {v(G + 12, 4)}, {v(45)}, {s(pWS, 2)} sc1")
    poll("op", ld_op, [G, G + 4, G + 8, G + 12], 28, sleep=opt.get("sleep", 0))
    stamp(8)
    for r in range(4):
        A.i(f"v_add_f32 {v(G + r)}, {v(G + r)}, {v(G + 4 + r)}")
        A.i(f"v_add_f32 {v(G + 8 + r)}, {v(G + 8 + r)}, {v(G + 12 + r)}")
    for r in range(4):
        A.i(f"v_add_f32 {v(G + r)}, {v(G + r)}, {v(G + 8 + r)}")
    ph_reduce(28, G)
    for r in range(4):
        A.i(f"v_add_f32 {v(28 + r)}, {v(28 + r)}, {v(XF + r)}")
    for r in range(4):
        A.i(f"v_cvt_pk_bf16_f32 {v(28 + r)}, {v(28 + r)}, {v(28 + r)}")
    sel_chain(D, [(28 + (u & 3), f"quad_perm:[{u >> 2},{u >> 2},{u >> 2},{u >> 2}]", v(WGU + 4 * u, 4)) for u in range(16)], 36)
    HF = 20
    for r in range(4):
        A.i(f"v_and_b32 {v(HF + r)}, 0xffff0000, {v(28 + r)}")
    A(f"""
    ds_write_b128 {v(46)}, {v(HF, 4)}
    v_add_f32 {v(24)}, {v(HF)}, {v(HF + 1)}
    v_add_f32 {v(25)}, {v(HF + 2)}, {v(HF + 3)}
    v_add_f32 {v(24)}, {v(24)}, {v(25)}
    ds_write_b128 {v(vRW)}, {v(D, 4)}
    """)
    row_allreduce("v_add_f32", [24])
    cross_rows("v_add_f32", [24], 26)
    A.i(f"v_mul_f32 {v(24)}, 0x3b800000, {v(24)}")
    for r in range(4):
        A.i(f"v_sub_f32 {v(HF + r)}, {v(HF + r)}, {v(24)}")
    A.i(f"v_mul_f32 {v(25)}, {v(HF)}, {v(HF)}")
    for r in range(1, 4):
        A.i(f"v_fmac_f32 {v(25)}, {v(HF + r)}, {v(HF + r)}")
    row_allreduce("v_add_f32", [25])
    cross_rows("v_add_f32", [25], 26)
    S0 = 36
    A(f"""
    ds_write_b64 {v(55)}, {v(24, 2)}
    s_waitcnt lgkmcnt(0)
    s_barrier
    ds_read_b128 {v(S0, 4)}, {v(56)} offset:{L_ST}
    ds_read_b128 {v(S0 + 4, 4)}, {v(56)} offset:{L_ST + 16}
    """)
    gu_reduce(R0)
    MU, RS = 24, 25
    A(f"""
    s_waitcnt lgkmcnt(2)
    v_add_f32 {v(MU)}, {v(S0)}, {v(S0 + 2)}
    v_add_f32 {v(26)}, {v(S0 + 4)}, {v(S0 + 6)}
    v_add_f32 {v(RS)}, {v(S0 + 1)}, {v(S0 + 3)}
    v_add_f32 {v(27)}, {v(S0 + 5)}, {v(S0 + 7)}
    v_add_f32 {v(MU)}, {v(MU)}, {v(26)}
    v_add_f32 {v(RS)}, {v(RS)}, {v(27)}
    v_mul_f32 {v(MU)}, 0x3e800000, {v(MU)}
    v_mul_f32 {v(RS)}, 0x3b800000, {v(RS)}
    """)
    for k in range(4):
        A.i(f"v_sub_f32 {v(S0 + 2 * k)}, {v(S0 + 2 * k)}, {v(MU)}")
    for k in range(4):
        A.i(f"v_fmac_f32 {v(RS)}, {v(S0 + 2 * k)}, {v(S0 + 2 * k)}")
    A(f"""
    v_mov_b32 {v(26)}, 0x3727c5ac
    v_fmac_f32 {v(26)}, 0x3e800000, {v(RS)}
    v_rsq_f32 {v(RS)}, {v(26)}
    s_waitcnt lgkmcnt(0)
    """)
    gu_sum(R0)
    for r in range(4):
        A.i(f"v_fma_f32 {v(R0 + r)}, -{v(MU)}, {v(CS + r)}, {v(R0 + r)}")
    for r in range(4):
        A.i(f"v_mul_f32 {v(R0 + r)}, {v(R0 + r)}, {v(RS)}")
    E = 28
    for r in range(4):
        A.i(f"v_mul_f32 {v(E + r)}, 0xbfb8aa3b, {v(R0 + r)}")
    for r in range(4):
        A.i(f"v_exp_f32 {v(E + r)}, {v(E + r)}")
    for r in range(4):
        A.i(f"v_add_f32 {v(E + r)}, 1.0, {v(E + r)}")
    for r in range(4):
        A.i(f"v_rcp_f32 {v(E + r)}, {v(E + r)}")
    for r in range(4):
        A.i(f"v_mul_f32 {v(E + r)}, {v(E + r)}, {v(R0 + r)}")
    for r in range(4):
        A.i(f"v_mul_f32_dpp {v(E + r)}, {v(R0 + r)}, {v(E + r)} quad_perm:[2,3,2,3] {DPPALL}")
    for r in range(4):
        A.i(f"v_cvt_pk_bf16_f32 {v(E + r)}, {v(E + r)}, {v(E + r)}")
    sel_chain(D, [(E + (u & 3), f"quad_perm:[{u >> 2},{u >> 2},{u >> 2},{u >> 2}]", v(WD + 4 * u, 4)) for u in range(8)], 36)
    tag4(D, D)
    setexec(0xFFFFFFFF, 0)
    A.i(f"global_store_dwordx4 {v(54)}, {v(D, 4)}, {s(pWS, 2)} sc1")
    execall()
    stamp(9)
    A(f"""
    s_cmp_ge_u32 {s(sFI)}, 16
    s_cbranch_scc1 L_idle
    s_cmp_lg_u32 {s(sW)}, 0
    s_cbranch_scc1 L_idle
    """)
    HA = 64
    HZ = 72
    A(f"""
    v_lshlrev_b32 {v(44)}, 5, {v(vL)}
    ds_read_b128 {v(HA, 4)}, {v(44)}
    ds_read_b128 {v(HA + 4, 4)}, {v(44)} offset:16
    s_lshr_b32 {s(sB)}, {s(sFI)}, 2
    s_lshl_b32 {s(sB)}, {s(sB)}, 7
    s_and_b32 {s(sC)}, {s(sFI)}, 1
    s_lshl_b32 {s(sC)}, {s(sC)}, 6
    s_add_u32 {s(sB)}, {s(sB)}, {s(sC)}
    s_and_b32 {s(sC)}, {s(sFI)}, 2
    s_lshl1_add_u32 {s(sB)}, {s(sC)}, {s(sB)}
    v_lshl_add_u32 {v(45)}, {v(vT + 3)}, 3, {s(sB)}
    v_lshlrev_b32 {v(46)}, 2, {v(45)}
    ds_read_b128 {v(HZ, 4)}, {v(46)}
    v_lshlrev_b32 {v(45)}, 1, {v(45)}
    s_lshl_b32 {s(sB)}, {s(sFI)}, 7
    s_add_u32 {s(sB)}, {s(sB)}, {WS_YP}
    v_lshl_add_u32 {v(47)}, {v(vT + 3)}, 4, {s(sB)}
    """)
    YA = 48
    for a in range(6):
        if a < 5:
            A.i(f"v_add_u32 {v(vT)}, {8 * a}, {v(vT + 2)}")
        else:
            A.i(f"v_add_u32 {v(vT)}, 40, {v(vT + 2)}")
            A.i(f"v_min_u32 {v(vT)}, 42, {v(vT)}")
        A.i(f"v_lshl_add_u32 {v(YA + a)}, {v(vT)}, 11, {v(47)}")
    WRF = 76
    for k in range(4):
        A.i(f"v_lshlrev_b32 {v(WRF + 2 * k)}, 16, {v(vWR + k)}")
        A.i(f"v_and_b32 {v(WRF + 2 * k + 1)}, 0xffff0000, {v(vWR + k)}")
    A.i("s_waitcnt lgkmcnt(0)")
    for k in range(8):
        A.i(f"v_sub_f32 {v(HA + k)}, {v(HA + k)}, {v(MU)}")
    A.i(f"v_mul_f32 {v(84)}, {v(HA)}, {v(WRF)}")
    for k in range(1, 8):
        A.i(f"v_fmac_f32 {v(84)}, {v(HA + k)}, {v(WRF + k)}")
    row_allreduce("v_add_f32", [84])
    cross_rows("v_add_f32", [84], 85)
    A(f"""
    v_mul_f32 {v(84)}, {v(84)}, {v(RS)}
    v_mul_f32 {v(84)}, 0xbfb8aa3b, {v(84)}
    v_exp_f32 {v(84)}, {v(84)}
    v_add_f32 {v(84)}, 1.0, {v(84)}
    v_rcp_f32 {v(84)}, {v(84)}
    """)
    for r in range(4):
        A.i(f"v_sub_f32 {v(88 + r)}, {v(HZ + r)}, {v(MU)}")
    for r in range(4):
        A.i(f"v_fmac_f32 {v(HZ + r)}, {v(88 + r)}, {v(RS)}")
    A(f"""
    v_cmp_gt_u32 vcc, 3, {v(vT + 2)}
    v_cndmask_b32 {v(86)}, 0, 1.0, vcc
    """)
    Y = 96

    def ld_yp():
        for a in range(6):
            A.i(f"global_load_dwordx4 {v(Y + 4 * a, 4)}, {v(YA + a)}, {s(pWS, 2)} sc1")
    poll("yp", ld_yp, [Y + 4 * a for a in range(6)], 87)
    stamp(10)
    for r in range(4):
        A.i(f"v_add_f32 {v(Y + r)}, {v(Y + r)}, {v(Y + 4 + r)}")
        A.i(f"v_add_f32 {v(Y + 8 + r)}, {v(Y + 8 + r)}, {v(Y + 12 + r)}")
        A.i(f"v_fmac_f32 {v(Y + 16 + r)}, {v(Y + 20 + r)}, {v(86)}")
    for r in range(4):
        A.i(f"v_add_f32 {v(Y + r)}, {v(Y + r)}, {v(Y + 8 + r)}")
    for r in range(4):
        A.i(f"v_add_f32 {v(Y + r)}, {v(Y + r)}, {v(Y + 16 + r)}")
    for r in range(4):
        A.i(f"v_add_f32_dpp {v(Y + r)}, {v(Y + r)}, {v(Y + r)} row_ror:8 {DPPALL}")
    cross_rows("v_add_f32", [Y + r for r in range(4)], Y + 4)
    for r in range(4):
        A.i(f"v_fmac_f32 {v(HZ + r)}, {v(Y + r)}, {v(84)}")
    A(f"""
    v_cvt_pk_bf16_f32 {v(HZ)}, {v(HZ)}, {v(HZ + 1)}
    v_cvt_pk_bf16_f32 {v(HZ + 1)}, {v(HZ + 2)}, {v(HZ + 3)}
    s_mov_b64 exec, 0xff
    global_store_dwordx2 {v(45)}, {v(HZ, 2)}, {s(pOUT, 2)}
    s_cmp_lg_u32 {s(sFI)}, 0
    s_cbranch_scc1 L_idle
    s_add_u32 {s(sE)}, {s(sE)}, 1
    s_mov_b64 exec, 1
    v_mov_b32 {v(44)}, {s(sE)}
    global_store_dword {v(56)}, {v(44)}, {s(pWS, 2)} sc1
    """)
    if amp:
        A(f"""
        s_memrealtime s[96:97]
        s_waitcnt lgkmcnt(0)
        s_sub_u32 s98, {s(sST + 2 * amp[1]) if amp[1] < 16 else 's96'}, {s(sST + 2 * amp[0])}
        s_min_u32 s98, s98, 10000
        s_mul_i32 s98, s98, {amp[2]}
        L_amp:
        s_memrealtime s[100:101]
        s_waitcnt lgkmcnt(0)
        s_sub_u32 s99, s100, s96
        s_cmp_lt_u32 s99, s98
        s_cbranch_scc1 L_amp
        """)
    A.label("L_idle")
    stamp(11)
    finish_stamps()
    A.i("s_endpgm")

    A.label("L_roleA")
    ckv_rows(8, 16)
    vK0, vK1, vQR, vV0, vV1 = 20, 21, 22, 23, 24
    QA = 26
    vQW = 25
    A(f"""
    v_subrev_u32 {v(vA1)}, 0x4000, {v(vA1)}
    v_xor_b32 {v(vA1)}, 0x10000, {v(vA1)}
    s_add_u32 m0, m0, {48 * PITCH}
    s_mul_i32 {s(sB)}, {s(sW)}, {16 * PITCH}
    v_mul_u32_u24 {v(vT)}, {PITCH}, {v(vC16)}
    v_lshl_add_u32 {v(vT)}, {v(vG)}, 4, {v(vT)}
    v_add_u32 {v(vK0)}, {s(sB)}, {v(vT)}
    v_add_u32 {v(vK1)}, {64 * PITCH}, {v(vK0)}
    v_add_u32 {v(vQR)}, {L_QL}, {v(vT)}
    v_lshrrev_b32 {v(vT)}, 2, {v(vL)}
    v_mul_u32_u24 {v(vT)}, {PITCH}, {v(vT)}
    v_and_b32 {v(vT + 1)}, 3, {v(vL)}
    v_lshl_add_u32 {v(vT)}, {v(vT + 1)}, 3, {v(vT)}
    s_lshl_b32 {s(sB)}, {s(sW)}, 8
    v_add_u32 {v(vV0)}, {s(sB)}, {v(vT)}
    v_add_u32 {v(vV1)}, {64 * PITCH}, {v(vV0)}
    s_and_b32 {s(sB)}, {s(sJJ)}, 1
    s_lshl_b32 {s(sB)}, {s(sB)}, 15
    s_add_u32 {s(sB)}, {s(sB)}, {WS_QL + 4096}
    v_add_u32 {v(QA)}, {s(sB)}, {v(vRW)}
    v_add_u32 {v(QA + 1)}, 0x2000, {v(QA)}
    v_add_u32 {v(QA + 2)}, 0x4000, {v(QA)}
    v_add_u32 {v(QA + 3)}, 0x6000, {v(QA)}
    s_lshr_b32 {s(sB)}, {s(sW)}, 1
    s_mul_i32 {s(sB)}, {s(sB)}, {PITCH}
    s_and_b32 {s(sC)}, {s(sW)}, 1
    s_lshl_b32 {s(sC)}, {s(sC)}, 9
    s_add_u32 {s(sB)}, {s(sB)}, {s(sC)}
    s_add_u32 {s(sB)}, {s(sB)}, {L_QL}
    v_lshl_add_u32 {v(vQW)}, {v(vL)}, 3, {s(sB)}
    s_waitcnt vmcnt(0)
    """)
    stamp(5)
    ckv_rows(0, 16)
    for sidx in range(16):
        A.i(f"ds_read_b128 {a_(4 * sidx, 4)}, {v(vK0)} offset:{64 * sidx}")
    QG = 32

    def ld_ql():
        for i in range(8):
            A.i(f"global_load_dwordx4 {v(QG + 4 * i, 4)}, {v(QA + (i >> 1))}, {s(pWS, 2)} offset:{-4096 if not (i & 1) else 0} sc1")
    poll("ql", ld_ql, [QG + 4 * i for i in range(8)], 30)
    stamp(6)
    for sidx in range(16):
        A.i(f"ds_read_b128 {a_(64 + 4 * sidx, 4)}, {v(vK1)} offset:{64 * sidx}")
    WUV = 160
    A(f"""
    s_and_b32 {s(sB)}, {s(sJJ)}, 3
    s_lshl_b32 {s(sB)}, {s(sB)}, 5
    s_add_u32 {s(sB)}, {s(sB)}, {s(sW)}
    s_lshl_b32 {s(sB)}, {s(sB)}, 15
    s_lshl_b32 {s(sC)}, {s(sH)}, 8
    s_add_u32 {s(sB)}, {s(sB)}, {s(sC)}
    v_lshlrev_b32 {v(vT)}, 13, {v(vG)}
    v_lshl_add_u32 {v(vT)}, {v(vC16)}, 4, {v(vT)}
    v_add_u32 {v(vA0)}, {s(sB)}, {v(vT)}
    """)
    for i in range(8):
        A.i(f"v_cvt_pk_bf16_f32 {v(QG + 4 * i)}, {v(QG + 4 * i)}, {v(QG + 4 * i + 1)}")
        A.i(f"v_cvt_pk_bf16_f32 {v(QG + 4 * i + 1)}, {v(QG + 4 * i + 2)}, {v(QG + 4 * i + 3)}")
        A.i(f"ds_write_b64 {v(vQW)}, {v(QG + 4 * i, 2)} offset:{2 * PITCH * i}")
    for u in range(8):
        A.i(f"global_load_dwordx4 {v(WUV + 4 * u, 4)}, {v(vA0)}, {s(pWUV, 2)} nt")
        if u < 7:
            A.i(f"v_add_u32 {v(vA0)}, 0x20000, {v(vA0)}")
    A(f"""
    s_waitcnt lgkmcnt(0)
    s_barrier
    """)
    stamp(7)
    QF = 80
    S0, S1 = 32, 36
    vreads = []
    for u in range(4):
        for t in range(8):
            base = 128 + 4 * (8 * u + t)
            vreads.append(f"ds_read_b64_tr_b16 {a_(base, 2)}, {v(vV0)} offset:{u * 16 * PITCH + 32 * t}")
            vreads.append(f"ds_read_b64_tr_b16 {a_(base + 2, 2)}, {v(vV1)} offset:{u * 16 * PITCH + 32 * t}")
    for sidx in range(12):
        A.i(f"ds_read_b128 {v(QF + 4 * sidx, 4)}, {v(vQR)} offset:{64 * sidx}")
    issued = list(range(12))
    vi = 0
    for sidx in range(16):
        pos = issued.index(sidx)
        A.i(f"s_waitcnt lgkmcnt({min(15, len(issued) - 1 - pos)})")
        A.i(f"v_mfma_f32_16x16x32_bf16 {v(S0, 4)}, {a_(4 * sidx, 4)}, {v(QF + 4 * sidx, 4)}, {'0' if sidx == 0 else v(S0, 4)}")
        if sidx < 4:
            A.i(f"ds_read_b128 {v(QF + 4 * (12 + sidx), 4)}, {v(vQR)} offset:{64 * (12 + sidx)}")
            issued.append(12 + sidx)
        else:
            A.i(vreads[vi]); vi += 1; issued.append(-1)
        A.i(f"v_mfma_f32_16x16x32_bf16 {v(S1, 4)}, {a_(64 + 4 * sidx, 4)}, {v(QF + 4 * sidx, 4)}, {'0' if sidx == 0 else v(S1, 4)}")
        if sidx >= 4:
            A.i(vreads[vi]); vi += 1; issued.append(-1)
    for _ in range(8):
        A.i(vreads[vi]); vi += 1
    stamp(8)
    MX = 40
    A(f"""
    v_max3_f32 {v(MX)}, {v(S0)}, {v(S0 + 1)}, {v(S0 + 2)}
    v_max3_f32 {v(MX + 1)}, {v(S0 + 3)}, {v(S1)}, {v(S1 + 1)}
    v_max3_f32 {v(MX)}, {v(MX)}, {v(S1 + 2)}, {v(S1 + 3)}
    v_max_f32 {v(MX)}, {v(MX)}, {v(MX + 1)}
    """)
    cross_rows("v_max_f32", [MX], MX + 1)
    A.i(f"v_ceil_f32 {v(MX)}, {v(MX)}")
    for k in range(8):
        A.i(f"v_sub_f32 {v(S0 + k)}, {v(S0 + k)}, {v(MX)}")
        A.i(vreads[vi]); vi += 1
    for k in range(8):
        A.i(f"v_exp_f32 {v(S0 + k)}, {v(S0 + k)}")
        A.i(vreads[vi]); vi += 1
    for k in range(4):
        A.i(f"v_cvt_pk_bf16_f32 {v(S0 + k)}, {v(S0 + 2 * k)}, {v(S0 + 2 * k + 1)}")
    A(f"""
    v_add_u32 {v(vT)}, {L_PB}, {v(vRW)}
    s_lshl_b32 {s(sB)}, {s(sW)}, 2
    s_add_u32 {s(sB)}, {s(sB)}, {L_M}
    v_lshl_add_u32 {v(vT + 1)}, {v(vC16)}, 4, {s(sB)}
    ds_write_b128 {v(vT)}, {v(S0, 4)}
    ds_write_b32 {v(vT + 1)}, {v(MX)}
    v_lshlrev_b32 {v(vT)}, 4, {v(vL)}
    v_add_u32 {v(vT)}, {L_PB}, {v(vT)}
    v_lshlrev_b32 {v(vT + 1)}, 4, {v(vC16)}
    v_add_u32 {v(vT + 1)}, {L_M}, {v(vT + 1)}
    s_waitcnt lgkmcnt(0)
    s_barrier
    """)
    P = 48
    MM = 44
    A.i(f"ds_read_b128 {v(MM, 4)}, {v(vT + 1)}")
    for u in range(4):
        A.i(f"ds_read_b128 {v(P + 4 * u, 4)}, {v(vT)} offset:{1024 * u}")
    nrest = len(vreads) - vi
    for _ in range(8):
        A.i(vreads[vi]); vi += 1
    ONES = 64
    HD = 68
    for q in range(4):
        A.i(f"v_mov_b32 {v(ONES + q)}, 0x3f803f80")
    A(f"""
    s_waitcnt lgkmcnt(12)
    v_max3_f32 {v(HD)}, {v(MM)}, {v(MM + 1)}, {v(MM + 2)}
    v_max_f32 {v(HD)}, {v(HD)}, {v(MM + 3)}
    """)
    for u in range(4):
        A.i(f"v_sub_f32 {v(MM + u)}, {v(HD)}, {v(MM + u)}")
    for u in range(4):
        A.i(f"v_cvt_u32_f32 {v(MM + u)}, {v(MM + u)}")
    for u in range(4):
        A.i(f"v_min_u32 {v(MM + u)}, 0xff, {v(MM + u)}")
    for u in range(4):
        A.i(f"v_mul_u32_u24 {v(MM + u)}, 0x800080, {v(MM + u)}")
    A.i("s_waitcnt lgkmcnt(8)")
    for u in range(4):
        for q in range(4):
            A.i(f"v_pk_sub_u16 {v(P + 4 * u + q)}, {v(P + 4 * u + q)}, {v(MM + u)} clamp")
    while vi < len(vreads):
        A.i(vreads[vi]); vi += 1
    ACC = 80
    LL = 72
    for u in range(4):
        if u == 3:
            A.i("s_waitcnt lgkmcnt(0)")
        for t in range(8):
            A.i(f"v_mfma_f32_16x16x32_bf16 {v(ACC + 4 * t, 4)}, {v(P + 4 * u, 4)}, {a_(128 + 4 * (8 * u + t), 4)}, {'0' if u == 0 else v(ACC + 4 * t, 4)}")
    for u in range(4):
        A.i(f"v_mfma_f32_16x16x32_bf16 {v(LL, 4)}, {v(ONES, 4)}, {v(P + 4 * u, 4)}, {'0' if u == 0 else v(LL, 4)}")
    stamp(9)
    A(f"""
    s_and_b32 {s(sB)}, {s(sJJ)}, 1
    s_lshl_b32 {s(sB)}, {s(sB)}, 20
    s_lshl_b32 {s(sC)}, {s(sW)}, 14
    s_add_u32 {s(sB)}, {s(sB)}, {s(sC)}
    s_lshr_b32 {s(sC)}, {s(sJJ)}, 1
    s_lshl3_add_u32 {s(sC)}, {s(sX)}, {s(sC)}
    s_lshl_b32 {s(sD)}, {s(sC)}, 8
    s_add_u32 {s(sB)}, {s(sB)}, {s(sD)}
    s_add_u32 {s(sB)}, {s(sB)}, {WS_PART}
    v_lshlrev_b32 {v(vT)}, 18, {v(vG)}
    v_lshl_add_u32 {v(vT)}, {v(vC16)}, 4, {v(vT)}
    v_add_u32 {v(vA0)}, {s(sB)}, {v(vT)}
    """)
    OUTP = 112
    for r in range(4):
        for q in range(4):
            A.i(f"v_cvt_pk_bf16_f32 {v(OUTP + 4 * r + q)}, {v(ACC + 8 * q + r)}, {v(ACC + 8 * q + 4 + r)}")
        A.i(f"global_store_dwordx4 {v(vA0)}, {v(OUTP + 4 * r, 4)}, {s(pWS, 2)} sc1")
        if r < 3:
            A.i(f"v_add_u32 {v(vA0)}, 0x10000, {v(vA0)}")
    A(f"""
    s_lshl4_add_u32 {s(sB)}, {s(sX)}, {s(sJJ)}
    s_lshl2_add_u32 {s(sB)}, {s(sB)}, {s(sW)}
    s_lshl_b32 {s(sB)}, {s(sB)}, 8
    s_add_u32 {s(sB)}, {s(sB)}, {WS_HDR}
    v_lshl_add_u32 {v(vA1)}, {v(vC16)}, 4, {s(sB)}
    v_mov_b32 {v(HD + 1)}, {v(LL)}
    v_mov_b32 {v(HD + 2)}, {s(sT)}
    v_mov_b32 {v(HD + 3)}, {s(sT)}
    """)
    vHA, vDA, vR1, vW2, vR2, vCP = 20, 21, 22, 23, 24, 25
    A(f"""
    v_lshrrev_b32 {v(vT)}, 2, {v(vC16)}
    v_add_u32 {v(vT + 1)}, {s(sW)}, {v(vT)}
    v_and_b32 {v(vT + 1)}, 3, {v(vT + 1)}
    v_and_b32 {v(vT + 4)}, 3, {v(vL)}
    v_lshl_add_u32 {v(vT + 1)}, {v(vT + 1)}, 2, {v(vT + 4)}
    v_lshl_add_u32 {v(vT + 1)}, {v(vT + 1)}, 2, {v(vG)}
    s_lshr_b32 {s(sB)}, {s(sH)}, 4
    s_and_b32 {s(sC)}, {s(sJJ)}, 3
    s_lshl2_add_u32 {s(sB)}, {s(sB)}, {s(sC)}
    s_lshl_b32 {s(sB)}, {s(sB)}, 8
    s_and_b32 {s(sD)}, {s(sH)}, 15
    s_lshl4_add_u32 {s(sB)}, {s(sD)}, {s(sB)}
    s_add_u32 {s(sB)}, {s(sB)}, {WS_HDR}
    v_lshl_add_u32 {v(vHA)}, {v(vT + 1)}, 11, {s(sB)}
    s_lshl2_add_u32 {s(sC)}, {s(sH)}, {s(sC)}
    s_lshl2_add_u32 {s(sB)}, {s(sC)}, {s(sW)}
    s_lshl_b32 {s(sB)}, {s(sB)}, 12
    s_add_u32 {s(sB)}, {s(sB)}, {WS_PART}
    v_lshl_add_u32 {v(vDA)}, {v(vL)}, 4, {s(sB)}
    v_and_b32 {v(vT + 1)}, 1, {v(vL)}
    v_lshl_add_u32 {v(vT + 1)}, {v(vT + 1)}, 4, {v(vG)}
    v_lshlrev_b32 {v(vT + 1)}, 4, {v(vT + 1)}
    v_lshl_add_u32 {v(vT + 1)}, {v(vT)}, 10, {v(vT + 1)}
    s_lshl_b32 {s(sB)}, {s(sW)}, 6
    s_add_u32 {s(sB)}, {s(sB)}, {L_RED2}
    v_add_u32 {v(vR1)}, {s(sB)}, {v(vT + 1)}
    v_add_u32 {v(vW2)}, {L_RED2}, {v(vRW)}
    s_and_b32 {s(sB)}, {s(sW)}, 1
    s_lshl_b32 {s(sB)}, {s(sB)}, 4
    v_add_u32 {v(vT + 1)}, {s(sB)}, {v(vO)}
    s_lshl_b32 {s(sC)}, {s(sC)}, 9
    s_add_u32 {s(sC)}, {s(sC)}, {WS_CP}
    v_lshl_add_u32 {v(vCP)}, {v(vT + 1)}, 4, {s(sC)}
    v_and_b32 {v(vT + 4)}, 1, {v(vT + 1)}
    v_lshrrev_b32 {v(vT + 1)}, 1, {v(vT + 1)}
    v_lshl_add_u32 {v(vT + 1)}, {v(vT + 4)}, 4, {v(vT + 1)}
    v_lshlrev_b32 {v(vT + 1)}, 4, {v(vT + 1)}
    v_lshl_add_u32 {v(vT + 1)}, {v(vT)}, 10, {v(vT + 1)}
    v_add_u32 {v(vR2)}, {L_RED2 + 4096}, {v(vT + 1)}
    s_waitcnt vmcnt(0)
    s_mov_b64 exec, 0xffff
    global_store_dwordx4 {v(vA1)}, {v(HD, 4)}, {s(pWS, 2)} sc1
    s_mov_b64 exec, -1
    """)
    stamp(10)
    H = 32

    def ld_h():
        A.i(f"global_load_dwordx4 {v(H, 4)}, {v(vHA)}, {s(pWS, 2)} sc1")
    poll("hdr", ld_h, None, None, full_tag_reg=H + 2)
    stamp(11)
    PD = 80
    for t in range(4):
        A.i(f"global_load_dwordx4 {v(PD + 4 * t, 4)}, {v(vDA)}, {s(pWS, 2)} offset:{1024 * t} sc1")
    A.i(f"v_mov_b32 {v(36)}, {v(H)}")
    row_allreduce("v_max_f32", [36])
    cross_rows("v_max_f32", [36], 37)
    A(f"""
    v_sub_f32 {v(36)}, {v(H)}, {v(36)}
    v_exp_f32 {v(36)}, {v(36)}
    v_mul_f32 {v(38)}, {v(36)}, {v(H + 1)}
    v_cvt_pk_bf16_f32 {v(36)}, {v(36)}, {v(36)}
    """)
    row_allreduce("v_add_f32", [38])
    cross_rows("v_add_f32", [38], 37)
    A.i(f"v_rcp_f32 {v(38)}, {v(38)}")
    D = 40
    AT = 48
    ms = [sel_mfma(D, 36, f"row_newbcast:{t}", v(PD + 4 * t, 4), AT + 4 * t, t == 0) for t in range(4)]
    for t in range(4):
        A.i(f"s_waitcnt vmcnt({3 - t})")
        A.i(ms[t])
    stamp(12)
    R0 = 44
    A(f"""
    ds_write_b128 {v(vW2)}, {v(D, 4)}
    s_waitcnt lgkmcnt(0)
    s_barrier
    ds_read_b128 {v(R0, 4)}, {v(vR1)}
    s_waitcnt lgkmcnt(0)
    """)
    for ror in (4, 8):
        for r in range(4):
            A.i(f"v_add_f32_dpp {v(R0 + r)}, {v(R0 + r)}, {v(R0 + r)} row_ror:{ror} {DPPALL}")
    for r in range(4):
        A.i(f"v_mul_f32 {v(R0 + r)}, {v(R0 + r)}, {v(38)}")
    for r in range(4):
        A.i(f"v_cvt_pk_bf16_f32 {v(R0 + r)}, {v(R0 + r)}, {v(R0 + r)}")
    sel_chain(D, [(R0 + (u & 3), f"quad_perm:[{u >> 2},{u >> 2},{u >> 2},{u >> 2}]", v(WUV + 4 * u, 4)) for u in range(8)], AT)
    A(f"""
    ds_write_b128 {v(vW2)}, {v(D, 4)} offset:4096
    s_waitcnt lgkmcnt(0)
    s_barrier
    ds_read_b128 {v(R0, 4)}, {v(vR2)}
    s_lshr_b32 {s(sB)}, {s(sW)}, 1
    s_lshl_b32 {s(sB)}, {s(sB)}, 5
    s_mov_b32 {s(sC)}, 0x000f000f
    s_mov_b32 {s(sD)}, 0
    s_lshl_b64 {s(sC, 2)}, {s(sC, 2)}, {s(sB)}
    s_waitcnt lgkmcnt(0)
    """)
    for ror in (4, 8):
        for r in range(4):
            A.i(f"v_add_f32_dpp {v(R0 + r)}, {v(R0 + r)}, {v(R0 + r)} row_ror:{ror} {DPPALL}")
    tag4(R0, R0)
    A(f"""
    s_mov_b64 exec, {s(sC, 2)}
    global_store_dwordx4 {v(vCP)}, {v(R0, 4)}, {s(pWS, 2)} sc1
    """)
    stamp(13)
    finish_stamps()
    A.label("L_end")
    A.i("s_endpgm")
    A.label("L_code_end")

    head = open("sequential_preLN__compressed_kv_cla__moe_arch_mod__decode.s.ref").read().split("\n")
    hdr = [ln for ln in head if ln.startswith(";") and "@launch" not in ln and "Override launch" not in ln and "grid=ceil" not in ln]
    out = "\n".join(hdr) + "\n"
    out += f"; @launch grid=(256,1,1) block=(256,1,1) lds={L_TOTAL}\n"
    out += f""".amdgcn_target "amdgcn-amd-amdhsa--gfx950"
.text
.globl {NAME}
.p2align 8
.type {NAME},@function
"""
    out += A.finish()
    out += f""".section .rodata,"a"
.p2align 6
.amdhsa_kernel {NAME}
  .amdhsa_next_free_vgpr 512
  .amdhsa_next_free_sgpr 102
  .amdhsa_accum_offset 256
  .amdhsa_group_segment_fixed_size 0
  .amdhsa_kernarg_size 112
  .amdhsa_user_sgpr_count 2
  .amdhsa_user_sgpr_kernarg_segment_ptr 1
  .amdhsa_system_sgpr_workgroup_id_x 1
.end_amdhsa_kernel
"""
    return out


if __name__ == "__main__":
    open("k1.s", "w").write(build(False))
    open("k1_st.s", "w").write(build(True))
    for nm, am in (("tot", (0, 99, 4)), ("s1", (0, 1, 10)), ("s2", (0, 2, 10)), ("s4", (0, 4, 10)), ("s6", (0, 6, 10))):
        open(f"amp_{nm}.s", "w").write(build(False, dict(amp=am)))
```

```python
import sys
from asmlib import Asm, v, s, a_

NAME = "sequential_preLN__compressed_kv_cla__moe_arch_mod__decode_kernel"

WS_QP = 0x1000
WS_QL = 0x20000
WS_HDR = 0x40000
WS_CP = 0x60000
WS_OP = 0x70000
WS_YP = 0x80000
WS_PART = 0x100000
LOCAL_DELTA = 0xa0000 - 0x1000
LOCAL_DELTA_CP = 0xc0000 - 0x60000
WS_STAMP = 0x400000

PITCH = 1056
L_QL = 128 * PITCH
L_PB = L_QL + 16 * PITCH
L_M = L_PB + 4096
L_TOTAL = L_M + 2048
L_RED = L_PB
L_RED2 = L_QL
L_H = 0
L_ST = 2048

pX, pCKV, pWQ, pWUK, pWUV, pWO, pWR, pWG, pWU, pWD, pOUT, pDBG, pWS = 4, 6, 8, 10, 12, 14, 18, 20, 22, 24, 26, 28, 30
sX, sJ, sW, sH, sJJ = 32, 33, 34, 35, 36
sA, sB, sC, sD = 38, 39, 48, 49
sT = 40
sE, sCNT = 45, 47
sPC = 50
sST = 64
POLL_LIMIT = 0x3ffff

DPPALL = "row_mask:0xf bank_mask:0xf"


def build(stamps=False, opt=None):
    opt = opt or {}
    A = Asm()
    nst = [0]

    amp = opt.get("amp")

    def stamp(k):
        if stamps or (amp and k in amp[:2]):
            A.i(f"s_memrealtime {s(sST + 2 * k, 2)}")

    def setexec(lo, hi):
        A.i(f"s_mov_b32 exec_lo, {lo:#x}")
        A.i(f"s_mov_b32 exec_hi, {hi:#x}")

    def execall():
        A.i("s_mov_b64 exec, -1")

    vL, vC16, vG, vFF = 1, 2, 3, 4
    vM = 8
    vRW, vRR = 5, 6
    vT = 12

    def row_allreduce(op, regs):
        for r in (8, 4, 2, 1):
            for x in regs:
                A.i(f"{op}_dpp {v(x)}, {v(x)}, {v(x)} row_ror:{r} {DPPALL}")

    def cross_rows(op, regs, tmp):
        for sw in ("v_permlane16_swap_b32", "v_permlane32_swap_b32"):
            for k, x in enumerate(regs):
                A.i(f"v_mov_b32 {v(tmp + k)}, {v(x)}")
            for k, x in enumerate(regs):
                A.i(f"{sw} {v(x)}, {v(tmp + k)}")
            for k, x in enumerate(regs):
                A.i(f"{op} {v(x)}, {v(x)}, {v(tmp + k)}")

    def tag4(dst, src):
        for r in range(4):
            A.i(f"v_bfi_b32 {v(dst + r)}, {v(vFF)}, {s(sT + r)}, {v(src + r)}")

    sPB, sLB = 60, 62

    def poll(name, loads, regs, acc, full_tag_reg=None, sleep=0, first_extra=None, dual=False):
        A.i(f"s_mov_b32 {s(sCNT)}, {POLL_LIMIT}")
        if first_extra:
            loads()
            first_extra[0]()
            A.i(f"s_waitcnt vmcnt({first_extra[1]})")
            A.i(f"s_branch L_pollc_{name}")
        A.label(f"L_poll_{name}")
        if sleep:
            A.i(f"s_sleep {sleep}")
        if dual:
            A.i(f"s_and_b32 {s(sPB)}, {s(sCNT)}, {opt.get('period', 8) - 1}")
            A.i(f"s_cselect_b64 {s(sPB, 2)}, {s(sLB, 2)}, {s(pWS, 2)}")
        loads()
        A.i("s_waitcnt vmcnt(0)")
        A.label(f"L_pollc_{name}")
        if full_tag_reg is not None:
            A.i(f"v_cmp_ne_u32 vcc, {s(sT)}, {v(full_tag_reg)}")
        else:
            first = True
            for g in regs:
                for r in range(4):
                    if first:
                        A.i(f"v_xor_b32 {v(acc)}, {s(sT + r)}, {v(g + r)}")
                        first = False
                    else:
                        A.i(f"v_bitop3_b32 {v(acc)}, {v(acc)}, {v(g + r)}, {s(sT + r)} bitop3:0xf6")
            A.i(f"v_and_b32 {v(acc)}, {v(acc)}, {v(vFF)}")
            A.i(f"v_cmp_ne_u32 vcc, 0, {v(acc)}")
        A.i(f"s_sub_u32 {s(sCNT)}, {s(sCNT)}, 1")
        A.i(f"s_cbranch_scc1 L_pollx_{name}")
        A.i(f"s_cbranch_vccnz L_poll_{name}")
        A.label(f"L_pollx_{name}")

    def sel_mfma(D, W, dppmod, B, Atmp, first):
        for q in range(4):
            if dppmod:
                A.i(f"v_and_b32_dpp {v(Atmp + q)}, {v(W)}, {v(vM + q)} {dppmod} {DPPALL}")
            else:
                A.i(f"v_and_b32 {v(Atmp + q)}, {v(W)}, {v(vM + q)}")
        return f"v_mfma_f32_16x16x32_bf16 {v(D, 4)}, {v(Atmp, 4)}, {B}, {'0' if first else v(D, 4)}"

    def sel_chain(D, items, Atmp, waits=None):
        pend = None
        for k, (W, mod, B) in enumerate(items):
            m = sel_mfma(D, W, mod, B, Atmp + 4 * (k & 1), k == 0)
            if pend:
                if waits and waits[k - 1] is not None:
                    A.i(waits[k - 1])
                A.i(pend)
            pend = m
        if waits and waits[-1] is not None:
            A.i(waits[-1])
        A.i(pend)

    def finish_stamps():
        if not stamps:
            return
        A.i(f"s_memtime {s(sST + 30, 2)}")
        A.i("s_waitcnt lgkmcnt(0)")
        execall()
        A.i(f"v_mov_b32 {v(20)}, 0")
        for k in range(16):
            A.i(f"v_writelane_b32 {v(20)}, {s(sST + 2 * k)}, {k}")
        A.i(f"s_lshl_b32 {s(sA)}, s2, 2")
        A.i(f"s_add_u32 {s(sA)}, {s(sA)}, {s(sW)}")
        A.i(f"s_lshl_b32 {s(sA)}, {s(sA)}, 6")
        A.i(f"s_add_u32 {s(sA)}, {s(sA)}, {WS_STAMP}")
        A.i(f"v_lshl_add_u32 {v(21)}, {v(vL)}, 2, {s(sA)}")
        setexec(0xFFFF, 0)
        A.i(f"global_store_dword {v(21)}, {v(20)}, {s(pWS, 2)}")

    A.label(NAME)
    A(f"""
    s_cmp_ge_u32 s2, 256
    s_cbranch_scc1 L_end
    s_load_dwordx16 s[4:19], s[0:1], 0
    s_load_dwordx8 s[20:27], s[0:1], 64
    s_load_dwordx4 s[28:31], s[0:1], 96
    """)
    if stamps:
        for k in range(16):
            A.i(f"s_mov_b32 {s(sST + 2 * k)}, 0")
    stamp(0)
    if stamps:
        A.i(f"s_memtime {s(sST + 28, 2)}")
    vXA, vX4, vWQ = 20, 24, 28
    vRole = 44
    vA0, vA1, vQ, vQG = 76, 77, 78, 26
    vO = 7
    sROW = 52
    RO = opt.get("r_own", 10)
    E0 = opt.get("e0", 2)
    E1 = opt.get("e1", 4)
    local = opt.get("local", True)
    st = {"m0": 0, "row": 0, "off": 0}

    def ckv_seg_start():
        st["off"] = 0

    def ckv_rows(n):
        for _ in range(n):
            if st["off"] == 4096:
                A.i(f"v_add_u32 {v(vA1)}, 0x1000, {v(vA1)}")
                st["off"] = 0
            want = st["row"] * PITCH - st["off"]
            if want != st["m0"]:
                A.i(f"s_add_u32 m0, m0, {want - st['m0']}")
                st["m0"] = want
            A.i(f"global_load_lds_dwordx4 {v(vA1)}, {s(pCKV, 2)} offset:{st['off']} nt")
            st["off"] += 1024
            st["row"] += 1

    A(f"""
    s_getpc_b64 {s(sPC, 2)}
    L_pc:
    v_lshrrev_b32 {v(vT)}, 6, v0
    v_and_b32 {v(vL)}, 63, v0
    s_and_b32 {s(sX)}, s2, 7
    s_lshr_b32 {s(sJ)}, s2, 3
    v_readfirstlane_b32 {s(sW)}, {v(vT)}
    s_lshr_b32 {s(sJJ)}, {s(sJ)}, 1
    s_lshr_b32 {s(sA)}, {s(sJ)}, 3
    s_lshl2_add_u32 {s(sH)}, {s(sX)}, {s(sA)}
    s_lshl_b32 {s(sA)}, {s(sJ)}, 10
    v_lshl_add_u32 {v(vT)}, v0, 2, {s(sA)}
    v_min_u32 {v(vT)}, L_code_end - L_pc - 4, {v(vT)}
    global_load_dword {v(vT + 1)}, {v(vT)}, {s(sPC, 2)}
    s_and_b32 {s(sA)}, {s(sJJ)}, 3
    s_lshl2_add_u32 {s(sA)}, {s(sA)}, {s(sW)}
    s_lshl_b32 {s(sA)}, {s(sA)}, 5
    v_lshrrev_b32 {v(vT + 2)}, 3, {v(vL)}
    v_and_b32 {v(vT + 3)}, 7, {v(vL)}
    v_lshl_add_u32 {v(vT + 4)}, {v(vT + 2)}, 2, {s(sA)}
    s_and_b32 {s(sB)}, {s(sJ)}, 1
    s_lshl1_add_u32 {s(sB)}, {s(sH)}, {s(sB)}
    s_lshl_b32 {s(sB)}, {s(sB)}, 7
    v_lshl_add_u32 {v(vT + 5)}, {v(vT + 3)}, 4, {s(sB)}
    v_lshl_add_u32 {v(vA0)}, {v(vT + 4)}, 13, {v(vT + 5)}
    v_lshlrev_b32 {v(vT + 4)}, 1, {v(vT + 4)}
    v_lshlrev_b32 {v(vRW)}, 4, {v(vL)}
    v_and_b32 {v(vC16)}, 15, {v(vL)}
    v_lshrrev_b32 {v(vG)}, 4, {v(vL)}
    s_lshr_b32 {s(sB)}, {s(sJJ)}, 1
    s_lshl3_add_u32 {s(sB)}, {s(sX)}, {s(sB)}
    s_lshl2_add_u32 {s(sB)}, {s(sB)}, {s(sW)}
    s_lshl_b32 {s(sROW)}, {s(sB)}, 15
    s_and_b32 {s(sC)}, {s(sJJ)}, 1
    s_mul_i32 {s(sC)}, {s(sC)}, {RO * 1024}
    s_add_u32 {s(sC)}, {s(sC)}, {s(sROW)}
    v_add_u32 {v(vA1)}, {s(sC)}, {v(vRW)}
    s_mul_i32 m0, {s(sW)}, {32 * PITCH}
    s_waitcnt lgkmcnt(0)
    s_load_dword {s(sE)}, {s(pWS, 2)}, 0
    global_load_dwordx4 {v(vXA, 4)}, {v(vRW)}, {s(pX, 2)}
    global_load_dwordx2 {v(vX4, 2)}, {v(vT + 4)}, {s(pX, 2)}
    """)
    for u in range(4):
        A.i(f"global_load_dwordx4 {v(vWQ + 4 * u, 4)}, {v(vA0)}, {s(pWQ, 2)} nt")
        if u < 3:
            A.i(f"v_add_u32 {v(vA0)}, 0x2000, {v(vA0)}")
    A(f"""
    s_add_u32 {s(sLB)}, {s(pWS)}, {LOCAL_DELTA}
    s_addc_u32 {s(sLB + 1)}, {s(pWS + 1)}, 0
    s_lshl_b32 {s(sB)}, {s(sH)}, 11
    s_add_u32 {s(sB)}, {s(sB)}, {WS_QP}
    v_lshrrev_b32 {v(vT)}, 3, {v(vC16)}
    v_lshl_add_u32 {v(vT)}, {v(vT)}, 2, {v(vG)}
    v_lshlrev_b32 {v(vT)}, 8, {v(vT)}
    v_lshl_add_u32 {v(vT)}, {v(vT + 3)}, 4, {v(vT)}
    v_add_u32 {v(vQG)}, {s(sB)}, {v(vT)}
    s_bitcmp1_b32 {s(sJ)}, 0
    s_cbranch_scc1 L_early_A
    v_lshl_add_u32 {v(vT)}, {v(vC16)}, 7, {s(sB)}
    global_load_dword {v(vT + 1)}, {v(vT)}, {s(sLB, 2)} sc1
    v_lshl_add_u32 {v(vT + 4)}, {v(vG)}, 3, {s(sA)}
    s_lshl_b32 {s(sB)}, {s(sH)}, 8
    v_lshl_add_u32 {v(vT + 5)}, {v(vC16)}, 4, {s(sB)}
    v_lshl_add_u32 {v(vA0)}, {v(vT + 4)}, 13, {v(vT + 5)}
    """)
    for u in range(8):
        A.i(f"global_load_dwordx4 {v(vRole + 4 * u, 4)}, {v(vA0)}, {s(pWUK, 2)} nt")
        if u < 7:
            A.i(f"v_add_u32 {v(vA0)}, 0x2000, {v(vA0)}")
    if E0:
        A.i("s_branch L_f1")
    A.label("L_early_A")
    ckv_rows(E0)
    A.label("L_f1")
    stamp(1)
    A(f"""
    v_and_b32 {v(vT + 4)}, 1, {v(vL)}
    v_lshlrev_b32 {v(vT + 4)}, 4, {v(vT + 4)}
    v_mov_b32 {v(vT + 5)}, 0xffff
    v_lshlrev_b32 {v(vT + 4)}, {v(vT + 4)}, {v(vT + 5)}
    v_lshrrev_b32 {v(vT + 5)}, 1, {v(vT + 3)}
    v_mov_b32 {v(vFF)}, 0xff
    """)
    for q in range(4):
        A.i(f"v_cmp_eq_u32 vcc, {q}, {v(vT + 5)}")
        A.i(f"v_cndmask_b32 {v(vM + q)}, 0, {v(vT + 4)}, vcc")
    A(f"""
    s_lshl_b32 {s(sB)}, {s(sW)}, 10
    v_add_u32 {v(vRW)}, {s(sB)}, {v(vRW)}
    v_and_b32 {v(vT + 4)}, 3, {v(vL)}
    v_lshl_add_u32 {v(vO)}, {v(vG)}, 2, {v(vT + 4)}
    v_lshrrev_b32 {v(vT + 5)}, 2, {v(vC16)}
    v_and_b32 {v(vT + 6)}, 8, {v(vO)}
    v_add_u32 {v(vT + 6)}, {v(vT + 6)}, {v(vO)}
    v_lshlrev_b32 {v(vT + 6)}, 4, {v(vT + 6)}
    v_lshl_add_u32 {v(vRR)}, {v(vT + 5)}, 10, {v(vT + 6)}
    v_add_u32 {v(vRR)}, {L_RED}, {v(vRR)}
    v_add_u32 {v(vT + 7)}, {L_RED}, {v(vRW)}
    s_and_b32 {s(sB)}, {s(sJ)}, 1
    s_lshl1_add_u32 {s(sB)}, {s(sH)}, {s(sB)}
    s_and_b32 {s(sC)}, {s(sJJ)}, 3
    s_lshl2_add_u32 {s(sB)}, {s(sB)}, {s(sC)}
    s_lshl_b32 {s(sB)}, {s(sB)}, 8
    s_add_u32 {s(sB)}, {s(sB)}, {WS_QP}
    v_lshl_add_u32 {v(vQ)}, {v(vO)}, 4, {s(sB)}
    v_mov_b32 {v(95)}, 0x3f803f80
    s_waitcnt lgkmcnt(0)
    s_mul_i32 {s(sT)}, {s(sE)}, 0x9e3779b1
    s_add_u32 {s(sT)}, {s(sT)}, 0x7f4a7c15
    s_lshr_b32 {s(sT + 1)}, {s(sT)}, 8
    s_lshr_b32 {s(sT + 2)}, {s(sT)}, 16
    s_lshr_b32 {s(sT + 3)}, {s(sT)}, 24
    s_lshl_b32 {s(sB)}, {s(sW)}, 4
    s_lshl_b64 {s(sC, 2)}, 15, {s(sB)}
    s_bitcmp1_b32 {s(sJ)}, 0
    s_cbranch_scc0 L_xw
    s_waitcnt vmcnt({4 + E0})
    L_xw:
    s_waitcnt vmcnt(13)
    """)
    stamp(2)
    x4f = 88
    sm, sq = 92, 93
    for k in range(4):
        A.i(f"v_dot2_f32_bf16 {v(sm)}, {v(vXA + k)}, {v(95)}, {'0' if k == 0 else v(sm)}")
        A.i(f"v_dot2_f32_bf16 {v(sq)}, {v(vXA + k)}, {v(vXA + k)}, {'0' if k == 0 else v(sq)}")
    unp = []
    for k in range(2):
        unp.append(f"v_lshlrev_b32 {v(x4f + 2 * k)}, 16, {v(vX4 + k)}")
        unp.append(f"v_and_b32 {v(x4f + 2 * k + 1)}, 0xffff0000, {v(vX4 + k)}")
    A.i(unp.pop(0)); A.i(unp.pop(0))
    for r in (8, 4, 2, 1):
        for x in (sm, sq):
            A.i(f"v_add_f32_dpp {v(x)}, {v(x)}, {v(x)} row_ror:{r} {DPPALL}")
        if unp:
            A.i(unp.pop(0))
    cross_rows("v_add_f32", [sm, sq], 80)
    A(f"""
    v_mul_f32 {v(sm)}, 0x3b000000, {v(sm)}
    v_mul_f32 {v(sq)}, 0x3b000000, {v(sq)}
    v_fma_f32 {v(sq)}, -{v(sm)}, {v(sm)}, {v(sq)}
    v_max_f32 {v(sq)}, 0, {v(sq)}
    v_add_f32 {v(sq)}, 0x3727c5ac, {v(sq)}
    v_rsq_f32 {v(sq)}, {v(sq)}
    """)
    for k in range(4):
        A.i(f"v_sub_f32 {v(x4f + k)}, {v(x4f + k)}, {v(sm)}")
    A.i(f"v_mul_f32 {v(sq)}, 0x3e0293ee, {v(sq)}")
    for k in range(4):
        A.i(f"v_mul_f32 {v(x4f + k)}, {v(x4f + k)}, {v(sq)}")
    for k in range(4):
        A.i(f"v_cvt_pk_bf16_f32 {v(x4f + k)}, {v(x4f + k)}, {v(x4f + k)}")
    D = 96
    ms = [sel_mfma(D, x4f + u, None, v(vWQ + 4 * u, 4), 100 + 4 * u, u == 0) for u in range(4)]
    A(f"""
    s_bitcmp1_b32 {s(sJ)}, 0
    s_cbranch_scc0 L_ww
    """)
    ckv_rows(E1)
    A(f"""
    s_waitcnt vmcnt({E0 + E1})
    L_ww:
    s_waitcnt vmcnt(9)
    """)
    for m_ in ms:
        A.i(m_)
    stamp(3)
    R0, R1 = 116, 120
    A(f"""
    ds_write_b128 {v(vT + 7)}, {v(D, 4)}
    s_waitcnt lgkmcnt(0)
    s_barrier
    ds_read_b128 {v(R0, 4)}, {v(vRR)}
    ds_read_b128 {v(R1, 4)}, {v(vRR)} offset:{40 * 16}
    s_waitcnt lgkmcnt(0)
    """)
    for r in range(4):
        A.i(f"v_add_f32 {v(R0 + r)}, {v(R0 + r)}, {v(R1 + r)}")
    for ror in (4, 8):
        for r in range(4):
            A.i(f"v_add_f32_dpp {v(R0 + r)}, {v(R0 + r)}, {v(R0 + r)} row_ror:{ror} {DPPALL}")
    tag4(R0, R0)
    A.i(f"s_mov_b64 exec, {s(sC, 2)}")
    if local:
        A.i(f"global_store_dwordx4 {v(vQ)}, {v(R0, 4)}, {s(sLB, 2)}")
    A(f"""
    global_store_dwordx4 {v(vQ)}, {v(R0, 4)}, {s(pWS, 2)} sc1
    s_mov_b64 exec, -1
    """)
    stamp(4)
    A(f"""
    s_bitcmp1_b32 {s(sJ)}, 0
    s_cbranch_scc1 L_roleA
    """)

    Q = 80
    RH = 16 - RO
    A(f"""
    s_lshl_b32 {s(sB)}, {s(sH)}, 9
    s_add_u32 {s(sB)}, {s(sB)}, {s(sA)}
    s_lshl_b32 {s(sB)}, {s(sB)}, 2
    s_add_u32 {s(sB)}, {s(sB)}, {WS_QL}
    v_lshl_add_u32 {v(vQ)}, {v(vT + 2)}, 4, {s(sB)}
    s_and_b32 {s(sB)}, {s(sJJ)}, 1
    s_mul_i32 {s(sB)}, {s(sB)}, {RH * 1024}
    s_add_u32 {s(sB)}, {s(sB)}, {s(sROW)}
    s_add_u32 {s(sB)}, {s(sB)}, {2 * RO * 1024}
    v_min_u32 {v(20)}, {max(RH * 8 - 1, 0)}, {v(vL)}
    v_lshl_add_u32 {v(20)}, {v(20)}, 7, {s(sB)}
    v_lshrrev_b32 {v(21)}, 1, {v(vL)}
    v_add_u32 {v(21)}, {s(sA)}, {v(21)}
    v_and_b32 {v(22)}, 1, {v(vL)}
    s_lshl_b32 {s(sB)}, {s(sH)}, 8
    v_lshl_add_u32 {v(22)}, {v(22)}, 7, {s(sB)}
    v_lshl_add_u32 {v(21)}, {v(21)}, 13, {v(22)}
    s_waitcnt vmcnt({opt.get("kq", 4)})
    """)
    stamp(12)
    qb = sPB if local else pWS

    def ld_q():
        A.i(f"global_load_dwordx4 {v(Q, 4)}, {v(vQG)}, {s(qb, 2)} sc1")
        A.i(f"global_load_dwordx4 {v(Q + 4, 4)}, {v(vQG)}, {s(qb, 2)} offset:128 sc1")
    poll("q", ld_q, [Q, Q + 4], 28, dual=local)
    if RH:
        A.i(f"global_load_dword {v(79)}, {v(20)}, {s(pCKV, 2)} nt")
    stamp(5)
    for j in range(4):
        A.i(f"v_permlane32_swap_b32 {v(Q + j)}, {v(Q + 4 + j)}")
    for j in range(4):
        A.i(f"v_add_f32 {v(Q + j)}, {v(Q + j)}, {v(Q + 4 + j)}")
    for j in range(2):
        A.i(f"v_permlane16_swap_b32 {v(Q + j)}, {v(Q + 2 + j)}")
    for j in range(2):
        A.i(f"v_add_f32 {v(Q + j)}, {v(Q + j)}, {v(Q + 2 + j)}")
    B = 28
    A(f"""
    v_cvt_pk_bf16_f32 {v(B)}, {v(Q)}, {v(Q + 1)}
    v_cvt_pk_bf16_f32 {v(B + 1)}, {v(Q)}, {v(Q + 1)}
    v_permlane16_swap_b32 {v(B)}, {v(B + 1)}
    v_mov_b32 {v(B + 2)}, {v(B)}
    v_mov_b32 {v(B + 3)}, {v(B + 1)}
    v_permlane32_swap_b32 {v(B)}, {v(B + 2)}
    v_permlane32_swap_b32 {v(B + 1)}, {v(B + 3)}
    """)
    acc = 32
    for q in range(4):
        for u in range(8):
            A.i(f"v_dot2_f32_bf16 {v(acc + u)}, {v(vRole + 4 * u + q)}, {v(B + q)}, {'0' if q == 0 else v(acc + u)}")
    X = 40
    for r in range(4):
        A.i(f"v_add_f32_dpp {v(X + r)}, {v(acc + r)}, {v(acc + r)} row_ror:8 row_mask:0xf bank_mask:0x3")
    for r in range(4):
        A.i(f"v_add_f32_dpp {v(X + r)}, {v(acc + 4 + r)}, {v(acc + 4 + r)} row_ror:8 row_mask:0xf bank_mask:0xc")
    for mod in ("row_half_mirror", "quad_perm:[1,0,3,2]", "quad_perm:[2,3,0,1]"):
        for r in range(4):
            A.i(f"v_add_f32_dpp {v(X + r)}, {v(X + r)}, {v(X + r)} {mod} {DPPALL}")
    A(f"""
    v_cvt_pk_bf16_f32 {v(X)}, {v(X)}, {v(X + 1)}
    v_cvt_pk_bf16_f32 {v(X + 1)}, {v(X + 2)}, {v(X + 3)}
    v_mov_b32 {v(X + 2)}, {s(sT)}
    """)
    setexec(0x01010101, 0x01010101)
    A.i(f"global_store_dwordx4 {v(vQ)}, {v(X, 4)}, {s(pWS, 2)} sc1")
    execall()
    stamp(6)
    if opt.get("gate", 2) >= 1:
        A.i("s_waitcnt vmcnt(0)")
    A.i(f"global_load_dword {v(79)}, {v(21)}, {s(pWUV, 2)} nt")
    if opt.get("gate", 2) >= 2:
        A.i("s_waitcnt vmcnt(0)")
    stamp(13)
    vPH, vK = vT + 4, vT + 5
    A(f"""
    v_bfe_u32 {v(vPH)}, {v(vL)}, 2, 1
    v_and_b32 {v(vK)}, 3, {v(vL)}
    s_cmp_ge_u32 {s(sJJ)}, 8
    s_cbranch_scc1 L_roleFFN
    """)

    def ph_reduce(dst, src):
        for r in range(4):
            A.i(f"v_add_f32_dpp {v(dst + r)}, {v(src + r)}, {v(src + r)} row_shl:4 row_mask:0xf bank_mask:0x5")
        for r in range(4):
            A.i(f"v_add_f32_dpp {v(dst + r)}, {v(src + r)}, {v(src + r)} row_shr:4 row_mask:0xf bank_mask:0xa")

    WO = 64
    A(f"""
    s_lshl2_add_u32 {s(sB)}, {s(sX)}, {s(sW)}
    s_lshl_b32 {s(sC)}, {s(sB)}, 17
    s_lshl_b32 {s(sD)}, {s(sJJ)}, 7
    s_add_u32 {s(sC)}, {s(sC)}, {s(sD)}
    v_lshlrev_b32 {v(vT)}, 14, {v(vT + 2)}
    v_lshl_add_u32 {v(vT)}, {v(vT + 3)}, 4, {v(vT)}
    v_add_u32 {v(44)}, {s(sC)}, {v(vT)}
    """)
    for u in range(16):
        A.i(f"global_load_dwordx4 {v(WO + 4 * u, 4)}, {v(44)}, {s(pWO, 2)} offset:{(u & 3) * 1024} nt")
        if (u & 3) == 3 and u < 15:
            A.i(f"v_add_u32 {v(44)}, 0x1000, {v(44)}")
        if u in opt.get("o_gates", ()):
            A.i("s_waitcnt vmcnt(0)")
    A(f"""
    s_lshl_b32 {s(sB)}, {s(sB)}, 11
    s_add_u32 {s(sB)}, {s(sB)}, {WS_CP}
    v_lshlrev_b32 {v(vT)}, 9, {v(vPH)}
    v_lshl_add_u32 {v(vT)}, {v(vT + 2)}, 6, {v(vT)}
    v_lshl_add_u32 {v(vT)}, {v(vK)}, 4, {v(vT)}
    v_add_u32 {v(44)}, {s(sB)}, {v(vT)}
    s_lshl_b32 {s(sB)}, {s(sX)}, 11
    s_lshl_b32 {s(sD)}, {s(sJJ)}, 8
    s_add_u32 {s(sB)}, {s(sB)}, {s(sD)}
    s_add_u32 {s(sB)}, {s(sB)}, {WS_OP}
    v_lshl_add_u32 {v(45)}, {v(vO)}, 4, {s(sB)}
    v_and_b32 {v(vT)}, 1, {v(vO)}
    v_lshrrev_b32 {v(vT + 1)}, 1, {v(vO)}
    v_lshl_add_u32 {v(vT)}, {v(vT)}, 4, {v(vT + 1)}
    v_lshrrev_b32 {v(vT + 1)}, 2, {v(vC16)}
    v_lshlrev_b32 {v(vT + 1)}, 10, {v(vT + 1)}
    v_lshl_add_u32 {v(vRR)}, {v(vT)}, 4, {v(vT + 1)}
    s_lshl_b32 {s(sB)}, {s(sW)}, 4
    s_lshl_b64 {s(sC, 2)}, 15, {s(sB)}
    s_waitcnt vmcnt(0)
    """)
    stamp(7)
    G = 20

    A(f"""
    s_add_u32 {s(sLB)}, {s(pWS)}, {LOCAL_DELTA_CP}
    s_addc_u32 {s(sLB + 1)}, {s(pWS + 1)}, 0
    """)

    def ld_cp():
        A.i(f"global_load_dwordx4 {v(G, 4)}, {v(44)}, {s(qb, 2)} sc1")
        A.i(f"global_load_dwordx4 {v(G + 4, 4)}, {v(44)}, {s(qb, 2)} offset:1024 sc1")
    poll("cp", ld_cp, [G, G + 4], 28, sleep=opt.get("sleep", 0), dual=local)
    stamp(8)
    for r in range(4):
        A.i(f"v_add_f32 {v(G + r)}, {v(G + r)}, {v(G + 4 + r)}")
    ph_reduce(28, G)
    for r in range(4):
        A.i(f"v_cvt_pk_bf16_f32 {v(28 + r)}, {v(28 + r)}, {v(28 + r)}")
    D = 32
    sel_chain(D, [(28 + (u & 3), f"quad_perm:[{u >> 2},{u >> 2},{u >> 2},{u >> 2}]", v(WO + 4 * u, 4)) for u in range(16)], 36)
    R0, R1 = 48, 52
    A(f"""
    ds_write_b128 {v(vRW)}, {v(D, 4)}
    s_waitcnt lgkmcnt(0)
    s_barrier
    ds_read_b128 {v(R0, 4)}, {v(vRR)}
    ds_read_b128 {v(R1, 4)}, {v(vRR)} offset:{40 * 16}
    s_waitcnt lgkmcnt(0)
    """)
    for r in range(4):
        A.i(f"v_add_f32 {v(R0 + r)}, {v(R0 + r)}, {v(R1 + r)}")
    for ror in (4, 8):
        for r in range(4):
            A.i(f"v_add_f32_dpp {v(R0 + r)}, {v(R0 + r)}, {v(R0 + r)} row_ror:{ror} {DPPALL}")
    tag4(R0, R0)
    A(f"""
    s_mov_b64 exec, {s(sC, 2)}
    global_store_dwordx4 {v(45)}, {v(R0, 4)}, {s(pWS, 2)} sc1
    """)
    stamp(9)
    finish_stamps()
    A.i("s_endpgm")

    A.label("L_roleFFN")
    sFI, sZ = 37, 53
    A(f"""
    s_mul_i32 {s(sB)}, {s(sX)}, 43
    s_add_u32 {s(sC)}, {s(sB)}, 43
    s_lshr_b32 {s(sB)}, {s(sB)}, 3
    s_lshr_b32 {s(sC)}, {s(sC)}, 3
    s_sub_u32 {s(sZ)}, {s(sJJ)}, 8
    s_add_u32 {s(sFI)}, {s(sZ)}, {s(sB)}
    s_lshl3_add_u32 {s(sZ)}, {s(sZ)}, {s(sX)}
    s_cmp_ge_u32 {s(sFI)}, {s(sC)}
    s_cbranch_scc1 L_idle
    """)
    WGU = 64
    WD = 128
    vXH = 160
    vWR = 166
    A(f"""
    s_lshl_b32 {s(sB)}, {s(sW)}, 7
    v_lshl_add_u32 {v(vT)}, {v(vT + 2)}, 4, {s(sB)}
    v_lshl_add_u32 {v(vT + 1)}, {v(vK)}, 2, {v(vT)}
    v_lshlrev_b32 {v(46)}, 1, {v(vT + 1)}
    global_load_dwordx2 {v(vXH, 2)}, {v(46)}, {s(pX, 2)}
    v_lshlrev_b32 {v(47)}, 4, {v(vL)}
    global_load_dwordx4 {v(vWR, 4)}, {v(47)}, {s(pWR, 2)}
    v_mul_u32_u24 {v(vT)}, 2752, {v(vT)}
    s_lshl_b32 {s(sB)}, {s(sFI)}, 6
    v_lshl_add_u32 {v(48)}, {v(vK)}, 4, {s(sB)}
    v_add_u32 {v(48)}, {v(48)}, {v(vT)}
    v_mov_b32 {v(49)}, 0
    v_cmp_eq_u32 vcc, 0, {v(vPH)}
    v_mov_b32 {v(50)}, {s(pWU)}
    v_mov_b32 {v(51)}, {s(pWU + 1)}
    v_mov_b32 {v(52)}, {s(pWG)}
    v_mov_b32 {v(53)}, {s(pWG + 1)}
    v_cndmask_b32 {v(50)}, {v(50)}, {v(52)}, vcc
    v_cndmask_b32 {v(51)}, {v(51)}, {v(53)}, vcc
    v_lshl_add_u64 {v(48, 2)}, {v(48, 2)}, 0, {v(50, 2)}
    s_mov_b32 {s(sC)}, {2 * 2752}
    s_mov_b32 {s(sD)}, 0
    """)
    for u in range(16):
        A.i(f"global_load_dwordx4 {v(WGU + 4 * u, 4)}, {v(48, 2)}, off offset:{(u & 1) * 2752} nt")
        if (u & 1) and u < 15:
            A.i(f"v_lshl_add_u64 {v(48, 2)}, {v(48, 2)}, 0, {s(sC, 2)}")
        if u in opt.get("f_gates", ()):
            A.i("s_waitcnt vmcnt(0)")
    A(f"""
    s_lshl_b32 {s(sB)}, {s(sFI)}, 15
    s_lshl_b32 {s(sC)}, {s(sW)}, 8
    s_add_u32 {s(sB)}, {s(sB)}, {s(sC)}
    v_lshlrev_b32 {v(vT)}, 13, {v(vG)}
    v_lshl_add_u32 {v(vT)}, {v(vC16)}, 4, {v(vT)}
    v_add_u32 {v(44)}, {s(sB)}, {v(vT)}
    """)
    for u in range(8):
        A.i(f"global_load_dwordx4 {v(WD + 4 * u, 4)}, {v(44)}, {s(pWD, 2)} offset:{(u & 3) * 1024} nt")
        if u == 3:
            A.i(f"v_add_u32 {v(44)}, 0x1000, {v(44)}")
    L_RF = 4096
    A(f"""
    v_lshlrev_b32 {v(46)}, 2, {v(vT + 1)}
    v_lshl_add_u32 {v(44)}, {v(vPH)}, 11, {v(46)}
    v_add_u32 {v(44)}, {WS_OP + 4096}, {v(44)}
    v_add_u32 {v(45)}, 0x2000, {v(44)}
    v_add_u32 {v(vRW)}, {L_RF}, {v(vRW)}
    v_and_b32 {v(vT)}, 1, {v(vL)}
    v_lshlrev_b32 {v(vT)}, 4, {v(vT)}
    v_and_b32 {v(vT + 1)}, 2, {v(vL)}
    v_lshl_add_u32 {v(vT)}, {v(vT + 1)}, 1, {v(vT)}
    v_add_u32 {v(vT)}, {v(vT)}, {v(vG)}
    v_lshrrev_b32 {v(vT + 1)}, 2, {v(vC16)}
    v_lshlrev_b32 {v(vT + 1)}, 10, {v(vT + 1)}
    v_lshl_add_u32 {v(vRR)}, {v(vT)}, 4, {v(vT + 1)}
    v_add_u32 {v(vRR)}, {L_RF}, {v(vRR)}
    s_lshl_b32 {s(sB)}, {s(sFI)}, 11
    s_lshl_b32 {s(sC)}, {s(sW)}, 9
    s_add_u32 {s(sB)}, {s(sB)}, {s(sC)}
    s_add_u32 {s(sB)}, {s(sB)}, {WS_YP}
    v_add_u32 {v(54)}, {s(sB)}, {v(47)}
    s_lshl_b32 {s(sB)}, {s(sW)}, 3
    s_add_u32 {s(sB)}, {s(sB)}, {L_ST}
    v_mov_b32 {v(55)}, {s(sB)}
    v_mov_b32 {v(56)}, 0
    v_mov_b32 {v(28)}, 0x3f803f80
    s_waitcnt vmcnt(8)
    """)
    XF = 162
    for k in range(2):
        A.i(f"v_lshlrev_b32 {v(XF + 2 * k)}, 16, {v(vXH + k)}")
        A.i(f"v_and_b32 {v(XF + 2 * k + 1)}, 0xffff0000, {v(vXH + k)}")
    D = 32
    CS = 170
    R0, R1 = 48, 60

    def gu_reduce(dst):
        A(f"""
        ds_read_b128 {v(dst, 4)}, {v(vRR)}
        ds_read_b128 {v(R1, 4)}, {v(vRR)} offset:{40 * 16}
        """)

    def gu_sum(dst):
        for r in range(4):
            A.i(f"v_add_f32 {v(dst + r)}, {v(dst + r)}, {v(R1 + r)}")
        for ror in (4, 8):
            for r in range(4):
                A.i(f"v_add_f32_dpp {v(dst + r)}, {v(dst + r)}, {v(dst + r)} row_ror:{ror} {DPPALL}")

    for q in range(4):
        A.i(f"v_and_b32 {v(36 + q)}, {v(28)}, {v(vM + q)}")
    for u in range(16):
        A.i(f"v_mfma_f32_16x16x32_bf16 {v(D, 4)}, {v(36, 4)}, {v(WGU + 4 * u, 4)}, {'0' if u == 0 else v(D, 4)}")
    A(f"""
    ds_write_b128 {v(vRW)}, {v(D, 4)}
    s_waitcnt lgkmcnt(0)
    s_barrier
    """)
    gu_reduce(CS + 2)
    CS = CS + 2
    A.i("s_waitcnt lgkmcnt(0)")
    gu_sum(CS)
    A(f"""
    s_barrier
    s_waitcnt vmcnt(0)
    """)
    stamp(7)
    G = 176

    def ld_op():
        A.i(f"global_load_dwordx4 {v(G, 4)}, {v(44)}, {s(pWS, 2)} offset:-4096 sc1")
        A.i(f"global_load_dwordx4 {v(G + 4, 4)}, {v(44)}, {s(pWS, 2)} sc1")
        A.i(f"global_load_dwordx4 {v(G + 8, 4)}, {v(45)}, {s(pWS, 2)} offset:-4096 sc1")
        A.i(f"global_load_dwordx4 {v(G + 12, 4)}, {v(45)}, {s(pWS, 2)} sc1")
    poll("op", ld_op, [G, G + 4, G + 8, G + 12], 28, sleep=opt.get("sleep", 0))
    stamp(8)
    for r in range(4):
        A.i(f"v_add_f32 {v(G + r)}, {v(G + r)}, {v(G + 4 + r)}")
        A.i(f"v_add_f32 {v(G + 8 + r)}, {v(G + 8 + r)}, {v(G + 12 + r)}")
    for r in range(4):
        A.i(f"v_add_f32 {v(G + r)}, {v(G + r)}, {v(G + 8 + r)}")
    ph_reduce(28, G)
    for r in range(4):
        A.i(f"v_add_f32 {v(28 + r)}, {v(28 + r)}, {v(XF + r)}")
    for r in range(4):
        A.i(f"v_cvt_pk_bf16_f32 {v(28 + r)}, {v(28 + r)}, {v(28 + r)}")
    sel_chain(D, [(28 + (u & 3), f"quad_perm:[{u >> 2},{u >> 2},{u >> 2},{u >> 2}]", v(WGU + 4 * u, 4)) for u in range(16)], 36)
    HF = 20
    for r in range(4):
        A.i(f"v_and_b32 {v(HF + r)}, 0xffff0000, {v(28 + r)}")
    A(f"""
    ds_write_b128 {v(46)}, {v(HF, 4)}
    v_add_f32 {v(24)}, {v(HF)}, {v(HF + 1)}
    v_add_f32 {v(25)}, {v(HF + 2)}, {v(HF + 3)}
    v_add_f32 {v(24)}, {v(24)}, {v(25)}
    ds_write_b128 {v(vRW)}, {v(D, 4)}
    """)
    row_allreduce("v_add_f32", [24])
    cross_rows("v_add_f32", [24], 26)
    A.i(f"v_mul_f32 {v(24)}, 0x3b800000, {v(24)}")
    for r in range(4):
        A.i(f"v_sub_f32 {v(HF + r)}, {v(HF + r)}, {v(24)}")
    A.i(f"v_mul_f32 {v(25)}, {v(HF)}, {v(HF)}")
    for r in range(1, 4):
        A.i(f"v_fmac_f32 {v(25)}, {v(HF + r)}, {v(HF + r)}")
    row_allreduce("v_add_f32", [25])
    cross_rows("v_add_f32", [25], 26)
    S0 = 36
    A(f"""
    ds_write_b64 {v(55)}, {v(24, 2)}
    s_waitcnt lgkmcnt(0)
    s_barrier
    ds_read_b128 {v(S0, 4)}, {v(56)} offset:{L_ST}
    ds_read_b128 {v(S0 + 4, 4)}, {v(56)} offset:{L_ST + 16}
    """)
    gu_reduce(R0)
    MU, RS = 24, 25
    A(f"""
    s_waitcnt lgkmcnt(2)
    v_add_f32 {v(MU)}, {v(S0)}, {v(S0 + 2)}
    v_add_f32 {v(26)}, {v(S0 + 4)}, {v(S0 + 6)}
    v_add_f32 {v(RS)}, {v(S0 + 1)}, {v(S0 + 3)}
    v_add_f32 {v(27)}, {v(S0 + 5)}, {v(S0 + 7)}
    v_add_f32 {v(MU)}, {v(MU)}, {v(26)}
    v_add_f32 {v(RS)}, {v(RS)}, {v(27)}
    v_mul_f32 {v(MU)}, 0x3e800000, {v(MU)}
    v_mul_f32 {v(RS)}, 0x3b800000, {v(RS)}
    """)
    for k in range(4):
        A.i(f"v_sub_f32 {v(S0 + 2 * k)}, {v(S0 + 2 * k)}, {v(MU)}")
    for k in range(4):
        A.i(f"v_fmac_f32 {v(RS)}, {v(S0 + 2 * k)}, {v(S0 + 2 * k)}")
    A(f"""
    v_mov_b32 {v(26)}, 0x3727c5ac
    v_fmac_f32 {v(26)}, 0x3e800000, {v(RS)}
    v_rsq_f32 {v(RS)}, {v(26)}
    s_waitcnt lgkmcnt(0)
    """)
    gu_sum(R0)
    for r in range(4):
        A.i(f"v_fma_f32 {v(R0 + r)}, -{v(MU)}, {v(CS + r)}, {v(R0 + r)}")
    for r in range(4):
        A.i(f"v_mul_f32 {v(R0 + r)}, {v(R0 + r)}, {v(RS)}")
    E = 28
    for r in range(4):
        A.i(f"v_mul_f32 {v(E + r)}, 0xbfb8aa3b, {v(R0 + r)}")
    for r in range(4):
        A.i(f"v_exp_f32 {v(E + r)}, {v(E + r)}")
    for r in range(4):
        A.i(f"v_add_f32 {v(E + r)}, 1.0, {v(E + r)}")
    for r in range(4):
        A.i(f"v_rcp_f32 {v(E + r)}, {v(E + r)}")
    for r in range(4):
        A.i(f"v_mul_f32 {v(E + r)}, {v(E + r)}, {v(R0 + r)}")
    for r in range(4):
        A.i(f"v_mul_f32_dpp {v(E + r)}, {v(R0 + r)}, {v(E + r)} quad_perm:[2,3,2,3] {DPPALL}")
    for r in range(4):
        A.i(f"v_cvt_pk_bf16_f32 {v(E + r)}, {v(E + r)}, {v(E + r)}")
    sel_chain(D, [(E + (u & 3), f"quad_perm:[{u >> 2},{u >> 2},{u >> 2},{u >> 2}]", v(WD + 4 * u, 4)) for u in range(8)], 36)
    tag4(D, D)
    setexec(0xFFFFFFFF, 0)
    A.i(f"global_store_dwordx4 {v(54)}, {v(D, 4)}, {s(pWS, 2)} sc1")
    execall()
    stamp(9)
    A(f"""
    s_cmp_ge_u32 {s(sZ)}, 16
    s_cbranch_scc1 L_idle
    s_cmp_lg_u32 {s(sW)}, 0
    s_cbranch_scc1 L_idle
    """)
    HA = 64
    HZ = 72
    A(f"""
    v_lshlrev_b32 {v(44)}, 5, {v(vL)}
    ds_read_b128 {v(HA, 4)}, {v(44)}
    ds_read_b128 {v(HA + 4, 4)}, {v(44)} offset:16
    s_lshr_b32 {s(sB)}, {s(sZ)}, 2
    s_lshl_b32 {s(sB)}, {s(sB)}, 7
    s_and_b32 {s(sC)}, {s(sZ)}, 1
    s_lshl_b32 {s(sC)}, {s(sC)}, 6
    s_add_u32 {s(sB)}, {s(sB)}, {s(sC)}
    s_and_b32 {s(sC)}, {s(sZ)}, 2
    s_lshl1_add_u32 {s(sB)}, {s(sC)}, {s(sB)}
    v_lshl_add_u32 {v(45)}, {v(vT + 3)}, 3, {s(sB)}
    v_lshlrev_b32 {v(46)}, 2, {v(45)}
    ds_read_b128 {v(HZ, 4)}, {v(46)}
    v_lshlrev_b32 {v(45)}, 1, {v(45)}
    s_lshl_b32 {s(sB)}, {s(sZ)}, 7
    s_add_u32 {s(sB)}, {s(sB)}, {WS_YP}
    v_lshl_add_u32 {v(47)}, {v(vT + 3)}, 4, {s(sB)}
    """)
    YA = 48
    for a in range(6):
        if a < 5:
            A.i(f"v_add_u32 {v(vT)}, {8 * a}, {v(vT + 2)}")
        else:
            A.i(f"v_add_u32 {v(vT)}, 40, {v(vT + 2)}")
            A.i(f"v_min_u32 {v(vT)}, 42, {v(vT)}")
        A.i(f"v_lshl_add_u32 {v(YA + a)}, {v(vT)}, 11, {v(47)}")
    WRF = 76
    for k in range(4):
        A.i(f"v_lshlrev_b32 {v(WRF + 2 * k)}, 16, {v(vWR + k)}")
        A.i(f"v_and_b32 {v(WRF + 2 * k + 1)}, 0xffff0000, {v(vWR + k)}")
    A.i("s_waitcnt lgkmcnt(0)")
    for k in range(8):
        A.i(f"v_sub_f32 {v(HA + k)}, {v(HA + k)}, {v(MU)}")
    A.i(f"v_mul_f32 {v(84)}, {v(HA)}, {v(WRF)}")
    for k in range(1, 8):
        A.i(f"v_fmac_f32 {v(84)}, {v(HA + k)}, {v(WRF + k)}")
    row_allreduce("v_add_f32", [84])
    cross_rows("v_add_f32", [84], 85)
    A(f"""
    v_mul_f32 {v(84)}, {v(84)}, {v(RS)}
    v_mul_f32 {v(84)}, 0xbfb8aa3b, {v(84)}
    v_exp_f32 {v(84)}, {v(84)}
    v_add_f32 {v(84)}, 1.0, {v(84)}
    v_rcp_f32 {v(84)}, {v(84)}
    """)
    for r in range(4):
        A.i(f"v_sub_f32 {v(88 + r)}, {v(HZ + r)}, {v(MU)}")
    for r in range(4):
        A.i(f"v_fmac_f32 {v(HZ + r)}, {v(88 + r)}, {v(RS)}")
    A(f"""
    v_cmp_gt_u32 vcc, 3, {v(vT + 2)}
    v_cndmask_b32 {v(86)}, 0, 1.0, vcc
    """)
    Y = 96

    def ld_yp():
        for a in range(6):
            A.i(f"global_load_dwordx4 {v(Y + 4 * a, 4)}, {v(YA + a)}, {s(pWS, 2)} sc1")
    poll("yp", ld_yp, [Y + 4 * a for a in range(6)], 87)
    stamp(10)
    for r in range(4):
        A.i(f"v_add_f32 {v(Y + r)}, {v(Y + r)}, {v(Y + 4 + r)}")
        A.i(f"v_add_f32 {v(Y + 8 + r)}, {v(Y + 8 + r)}, {v(Y + 12 + r)}")
        A.i(f"v_fmac_f32 {v(Y + 16 + r)}, {v(Y + 20 + r)}, {v(86)}")
    for r in range(4):
        A.i(f"v_add_f32 {v(Y + r)}, {v(Y + r)}, {v(Y + 8 + r)}")
    for r in range(4):
        A.i(f"v_add_f32 {v(Y + r)}, {v(Y + r)}, {v(Y + 16 + r)}")
    for r in range(4):
        A.i(f"v_add_f32_dpp {v(Y + r)}, {v(Y + r)}, {v(Y + r)} row_ror:8 {DPPALL}")
    cross_rows("v_add_f32", [Y + r for r in range(4)], Y + 4)
    for r in range(4):
        A.i(f"v_fmac_f32 {v(HZ + r)}, {v(Y + r)}, {v(84)}")
    A(f"""
    v_cvt_pk_bf16_f32 {v(HZ)}, {v(HZ)}, {v(HZ + 1)}
    v_cvt_pk_bf16_f32 {v(HZ + 1)}, {v(HZ + 2)}, {v(HZ + 3)}
    s_mov_b64 exec, 0xff
    global_store_dwordx2 {v(45)}, {v(HZ, 2)}, {s(pOUT, 2)}
    s_cmp_lg_u32 {s(sZ)}, 0
    s_cbranch_scc1 L_idle
    s_add_u32 {s(sE)}, {s(sE)}, 1
    s_mov_b64 exec, 1
    v_mov_b32 {v(44)}, {s(sE)}
    global_store_dword {v(56)}, {v(44)}, {s(pWS, 2)} sc1
    """)
    if amp:
        A(f"""
        s_memrealtime s[96:97]
        s_waitcnt lgkmcnt(0)
        s_sub_u32 s98, {s(sST + 2 * amp[1]) if amp[1] < 16 else 's96'}, {s(sST + 2 * amp[0])}
        s_min_u32 s98, s98, 10000
        s_mul_i32 s98, s98, {amp[2]}
        L_amp:
        s_memrealtime s[100:101]
        s_waitcnt lgkmcnt(0)
        s_sub_u32 s99, s100, s96
        s_cmp_lt_u32 s99, s98
        s_cbranch_scc1 L_amp
        """)
    A.label("L_idle")
    stamp(11)
    finish_stamps()
    A.i("s_endpgm")

    A.label("L_roleA")
    ckv_rows(RO - E0 - E1)
    vK0, vK1, vQR, vV0, vV1 = 20, 21, 22, 23, 24
    QA = 26
    vQW = 25
    vPW, vMW, vPR, vMR = 144, 145, 146, 147
    WUV = 160
    A(f"""
    s_and_b32 {s(sB)}, {s(sJJ)}, 1
    s_lshl_b32 {s(sB)}, {s(sB)}, 20
    s_lshl_b32 {s(sC)}, {s(sW)}, 14
    s_add_u32 {s(sB)}, {s(sB)}, {s(sC)}
    s_lshr_b32 {s(sC)}, {s(sJJ)}, 1
    s_lshl3_add_u32 {s(sC)}, {s(sX)}, {s(sC)}
    s_lshl_b32 {s(sD)}, {s(sC)}, 8
    s_add_u32 {s(sB)}, {s(sB)}, {s(sD)}
    s_add_u32 {s(sB)}, {s(sB)}, {WS_PART}
    v_lshlrev_b32 {v(vT)}, 18, {v(vG)}
    v_lshl_add_u32 {v(vT)}, {v(vC16)}, 4, {v(vT)}
    v_add_u32 {v(152)}, {s(sB)}, {v(vT)}
    v_add_u32 {v(153)}, 0x10000, {v(152)}
    v_add_u32 {v(154)}, 0x20000, {v(152)}
    v_add_u32 {v(155)}, 0x30000, {v(152)}
    """)
    A(f"""
    s_add_u32 {s(sLB)}, {s(pWS)}, {LOCAL_DELTA_CP}
    s_addc_u32 {s(sLB + 1)}, {s(pWS + 1)}, 0
    s_mul_i32 {s(sB)}, {s(sW)}, {32 * PITCH}
    v_mul_u32_u24 {v(vT)}, {PITCH}, {v(vC16)}
    v_lshl_add_u32 {v(vT)}, {v(vG)}, 4, {v(vT)}
    v_add_u32 {v(vK0)}, {s(sB)}, {v(vT)}
    v_add_u32 {v(vK1)}, {16 * PITCH}, {v(vK0)}
    v_add_u32 {v(vQR)}, {L_QL}, {v(vT)}
    v_lshrrev_b32 {v(vT)}, 2, {v(vL)}
    v_mul_u32_u24 {v(vT)}, {PITCH}, {v(vT)}
    v_and_b32 {v(vT + 1)}, 3, {v(vL)}
    v_lshl_add_u32 {v(vT)}, {v(vT + 1)}, 3, {v(vT)}
    s_lshl_b32 {s(sB)}, {s(sW)}, 8
    v_add_u32 {v(vV0)}, {s(sB)}, {v(vT)}
    v_add_u32 {v(vV1)}, {64 * PITCH}, {v(vV0)}
    s_and_b32 {s(sB)}, {s(sJJ)}, 1
    s_lshl_b32 {s(sB)}, {s(sB)}, 15
    s_add_u32 {s(sB)}, {s(sB)}, {WS_QL + 4096}
    v_add_u32 {v(QA)}, {s(sB)}, {v(vRW)}
    v_add_u32 {v(QA + 1)}, 0x2000, {v(QA)}
    v_add_u32 {v(QA + 2)}, 0x4000, {v(QA)}
    v_add_u32 {v(QA + 3)}, 0x6000, {v(QA)}
    s_lshr_b32 {s(sB)}, {s(sW)}, 1
    s_mul_i32 {s(sB)}, {s(sB)}, {PITCH}
    s_and_b32 {s(sC)}, {s(sW)}, 1
    s_lshl_b32 {s(sC)}, {s(sC)}, 9
    s_add_u32 {s(sB)}, {s(sB)}, {s(sC)}
    s_add_u32 {s(sB)}, {s(sB)}, {L_QL}
    v_lshl_add_u32 {v(vQW)}, {v(vL)}, 3, {s(sB)}
    v_add_u32 {v(vPW)}, {L_PB}, {v(vRW)}
    v_lshlrev_b32 {v(vT)}, 5, {v(vL)}
    v_add_u32 {v(vMR)}, {L_M}, {v(vT)}
    s_lshl_b32 {s(sB)}, {s(sW)}, 3
    v_add_u32 {v(vMW)}, {s(sB)}, {v(vMR)}
    v_lshlrev_b32 {v(vT)}, 4, {v(vL)}
    v_add_u32 {v(vPR)}, {L_PB}, {v(vT)}
    s_and_b32 {s(sB)}, {s(sJJ)}, 3
    s_lshl_b32 {s(sB)}, {s(sB)}, 5
    s_add_u32 {s(sB)}, {s(sB)}, {s(sW)}
    s_lshl_b32 {s(sB)}, {s(sB)}, 15
    s_lshl_b32 {s(sC)}, {s(sH)}, 8
    s_add_u32 {s(sB)}, {s(sB)}, {s(sC)}
    v_lshlrev_b32 {v(vT + 1)}, 13, {v(vG)}
    v_lshl_add_u32 {v(vT + 1)}, {v(vC16)}, 4, {v(vT + 1)}
    v_add_u32 {v(vA0)}, {s(sB)}, {v(vT + 1)}
    s_andn2_b32 {s(sB)}, 1, {s(sJJ)}
    s_mul_i32 {s(sB)}, {s(sB)}, {RO * 1024}
    s_add_u32 {s(sB)}, {s(sB)}, {s(sROW)}
    v_add_u32 {v(vA1)}, {s(sB)}, {v(vT)}
    s_add_u32 {s(sB)}, {s(sROW)}, {2 * RO * 1024}
    v_add_u32 {v(vT)}, {s(sB)}, {v(vT)}
    s_waitcnt vmcnt({opt.get("own_wait", 0)})
    """)
    stamp(5)
    ckv_seg_start()
    ckv_rows(RO)
    A.i(f"v_mov_b32 {v(vA1)}, {v(vT)}")
    ckv_seg_start()
    NH = 32 - 2 * RO
    GP = min(opt.get("gp", 0), NH)
    QG = 32
    mk = [16, 18, 20, 22, 24, 54, 56, 58]

    def ld_ql(i):
        A.i(f"global_load_dwordx3 {v(QG + 4 * i, 3)}, {v(QA + (i >> 1))}, {s(pWS, 2)} offset:{-4096 if not (i & 1) else 0} sc1")
    ckv_rows(GP)
    if opt.get("gwait") is not None:
        A.i(f"s_waitcnt vmcnt({opt['gwait']})")
    for i in range(8):
        ld_ql(i)
    ckv_rows(NH - GP)
    A.i("s_waitcnt vmcnt(24)")
    for sidx in range(16):
        A.i(f"ds_read_b128 {a_(4 * sidx, 4)}, {v(vK0)} offset:{64 * sidx}")
    A(f"""
    s_mov_b32 {s(sCNT)}, {POLL_LIMIT}
    s_waitcnt vmcnt({NH - GP})
    s_branch L_ql_check
    L_ql_retry:
    """)
    for i in range(8):
        A.i(f"s_mov_b64 exec, {s(mk[i], 2)}")
        A.i(f"s_cbranch_execz L_ql_skip{i}")
        ld_ql(i)
        A.label(f"L_ql_skip{i}")
    A(f"""
    s_mov_b64 exec, -1
    s_waitcnt vmcnt(0)
    L_ql_check:
    """)
    for i in range(8):
        A.i(f"v_cmp_ne_u32 {s(mk[i], 2)}, {s(sT)}, {v(QG + 4 * i + 2)}")
    A.i(f"s_or_b64 vcc, {s(mk[0], 2)}, {s(mk[1], 2)}")
    for i in range(2, 8):
        A.i(f"s_or_b64 vcc, vcc, {s(mk[i], 2)}")
    A(f"""
    s_cbranch_scc0 L_ql_done
    s_sub_u32 {s(sCNT)}, {s(sCNT)}, 1
    s_cbranch_scc0 L_ql_retry
    L_ql_done:
    """)
    stamp(6)
    for i in range(8):
        A.i(f"ds_write_b64 {v(vQW)}, {v(QG + 4 * i, 2)} offset:{2 * PITCH * i}")
    A(f"""
    s_waitcnt lgkmcnt(0)
    s_barrier
    """)
    stamp(7)
    QF = 80
    S0, S1 = 32, 36

    def vread(half, u, t):
        base = 128 + 4 * (8 * u + t) + 2 * half
        return f"ds_read_b64_tr_b16 {a_(base, 2)}, {v(vV1 if u >> 1 else vV0)} offset:{((u & 1) * 32 + half * 16) * PITCH + 32 * t}"
    v0reads = [vread(0, u, t) for u in range(4) for t in range(8)]
    v1reads = [vread(1, u, t) for u in range(4) for t in range(8)]
    for sidx in range(12):
        A.i(f"ds_read_b128 {v(QF + 4 * sidx, 4)}, {v(vQR)} offset:{64 * sidx}")
    issued = list(range(12))
    for sidx in range(16):
        pos = issued.index(sidx)
        A.i(f"s_waitcnt lgkmcnt({min(15, len(issued) - 1 - pos)})")
        A.i(f"v_mfma_f32_16x16x32_bf16 {v(S0, 4)}, {a_(4 * sidx, 4)}, {v(QF + 4 * sidx, 4)}, {'0' if sidx == 0 else v(S0, 4)}")
        if sidx < 4:
            A.i(f"ds_read_b128 {v(QF + 4 * (12 + sidx), 4)}, {v(vQR)} offset:{64 * (12 + sidx)}")
            issued.append(12 + sidx)
    A(f"""
    s_waitcnt vmcnt(0)
    """)
    for sidx in range(12):
        A.i(f"ds_read_b128 {a_(64 + 4 * sidx, 4)}, {v(vK1)} offset:{64 * sidx}")
    A.i("s_barrier")
    stamp(8)
    MX = 40
    issued = list(range(12))
    vq = v0reads + v1reads
    vi = 0
    for sidx in range(16):
        pos = issued.index(sidx)
        A.i(f"s_waitcnt lgkmcnt({min(15, len(issued) - 1 - pos)})")
        A.i(f"v_mfma_f32_16x16x32_bf16 {v(S1, 4)}, {a_(64 + 4 * sidx, 4)}, {v(QF + 4 * sidx, 4)}, {'0' if sidx == 0 else v(S1, 4)}")
        if sidx < 4:
            A.i(f"ds_read_b128 {a_(64 + 4 * (12 + sidx), 4)}, {v(vK1)} offset:{64 * (12 + sidx)}")
            issued.append(12 + sidx)
            if sidx == 0:
                A.i(f"v_max3_f32 {v(MX)}, {v(S0)}, {v(S0 + 1)}, {v(S0 + 2)}")
        else:
            for _ in range(2):
                A.i(vq[vi]); vi += 1; issued.append(-1)
    for _ in range(8):
        A.i(vq[vi]); vi += 1
    A(f"""
    v_max3_f32 {v(MX)}, {v(MX)}, {v(S0 + 3)}, {v(S1)}
    v_max3_f32 {v(MX + 1)}, {v(S1 + 1)}, {v(S1 + 2)}, {v(S1 + 3)}
    v_max_f32 {v(MX)}, {v(MX)}, {v(MX + 1)}
    v_ceil_f32 {v(MX)}, {v(MX)}
    """)
    side = [f"v_mul_f32 {v(42)}, 0x43000000, {v(MX)}",
            f"v_mov_b32 {v(43)}, {v(42)}",
            f"v_mov_b32 {v(41)}, {v(42)}",
            None,
            f"v_permlane16_swap_b32 {v(43)}, {v(41)}",
            f"v_max_f32 {v(43)}, {v(43)}, {v(41)}",
            f"v_mov_b32 {v(41)}, {v(43)}",
            None,
            f"v_permlane32_swap_b32 {v(43)}, {v(41)}",
            f"v_max_f32 {v(43)}, {v(43)}, {v(41)}"]
    for k in range(8):
        A.i(f"v_sub_f32 {v(S0 + k)}, {v(S0 + k)}, {v(MX)}")
        if k < 3:
            A.i(side[k])
    for k in range(8):
        A.i(f"v_exp_f32 {v(S0 + k)}, {v(S0 + k)}")
        if k + 3 < len(side) and side[k + 3]:
            A.i(side[k + 3])
    A.i(f"ds_write_b64 {v(vMW)}, {v(42, 2)}")
    for k in range(4):
        A.i(f"v_cvt_pk_bf16_f32 {v(S0 + k)}, {v(S0 + 2 * k)}, {v(S0 + 2 * k + 1)}")
    A.i(f"ds_write_b128 {v(vPW)}, {v(S0, 4)}")
    for _ in range(8):
        A.i(vq[vi]); vi += 1
    A(f"""
    s_waitcnt lgkmcnt(8)
    s_barrier
    """)
    stamp(9)
    P = 48
    MM = 64
    HD = 148
    A.i(f"ds_read_b128 {v(MM, 4)}, {v(vMR)}")
    A.i(f"ds_read_b128 {v(MM + 4, 4)}, {v(vMR)} offset:16")
    for u in range(4):
        A.i(f"ds_read_b128 {v(P + 4 * u, 4)}, {v(vPR)} offset:{1024 * u}")
    for _ in range(8):
        A.i(vq[vi]); vi += 1
    A(f"""
    s_waitcnt lgkmcnt(12)
    v_max3_f32 {v(HD)}, {v(MM + 1)}, {v(MM + 3)}, {v(MM + 5)}
    v_max_f32 {v(HD)}, {v(HD)}, {v(MM + 7)}
    """)

    def delta(u):
        return [f"v_sub_f32 {v(MM + 2 * u)}, {v(HD)}, {v(MM + 2 * u)}",
                f"v_cvt_u32_f32 {v(MM + 2 * u)}, {v(MM + 2 * u)}",
                f"v_cvt_pk_u16_u32 {v(MM + 2 * u)}, {v(MM + 2 * u)}, {v(MM + 2 * u)}"] + \
               [f"v_pk_sub_u16 {v(P + 4 * u + q)}, {v(P + 4 * u + q)}, {v(MM + 2 * u)} clamp" for q in range(4)]
    d0 = delta(0)
    for x in d0[:3]:
        A.i(x)
    A.i("s_waitcnt lgkmcnt(8)")
    for x in d0[3:]:
        A.i(x)
    fill = delta(1) + delta(2) + delta(3)
    ACC = 80
    OUTP = 112

    def pv(u, t):
        return f"v_mfma_f32_16x16x32_bf16 {v(ACC + 4 * t, 4)}, {v(P + 4 * u, 4)}, {a_(128 + 4 * (8 * u + t), 4)}, {'0' if u == 0 else v(ACC + 4 * t, 4)}"
    A.i(fill.pop(0)); A.i(fill.pop(0))
    for t in range(8):
        A.i(pv(0, t))
        for _ in range(2):
            A.i(vq[vi]); vi += 1
        A.i(fill.pop(0))
    assert vi == len(vq)
    A.i("s_waitcnt lgkmcnt(15)")
    for t in range(8):
        A.i(pv(1, t))
        for _ in range(2):
            if fill:
                A.i(fill.pop(0))
    assert not fill
    A.i("s_waitcnt lgkmcnt(0)")
    cv = []
    for t in range(8):
        A.i(pv(2, t))
        for _ in range(1):
            if cv:
                A.i(cv.pop(0))
        A.i(pv(3, t))
        for _ in range(1):
            if cv:
                A.i(cv.pop(0))
        if t in (3, 5):
            q = (t - 3) // 2
            cv += [f"v_cvt_pk_bf16_f32 {v(OUTP + 4 * r + q)}, {v(ACC + 8 * q + r)}, {v(ACC + 8 * q + 4 + r)}" for r in range(4)]
    assert not cv
    stamp(10)
    for r in range(4):
        A.i(f"v_cvt_pk_bf16_f32 {v(OUTP + 4 * r + 2)}, {v(ACC + 16 + r)}, {v(ACC + 20 + r)}")
    for r in range(4):
        A.i(f"v_cvt_pk_bf16_f32 {v(OUTP + 4 * r + 3)}, {v(ACC + 24 + r)}, {v(ACC + 28 + r)}")
        A.i(f"global_store_dwordx4 {v(152 + r)}, {v(OUTP + 4 * r, 4)}, {s(pWS, 2)} sc1")
    for u in range(8):
        A.i(f"global_load_dwordx4 {v(WUV + 4 * u, 4)}, {v(vA0)}, {s(pWUV, 2)} nt")
        if u < 7:
            A.i(f"v_add_u32 {v(vA0)}, 0x20000, {v(vA0)}")
    ONES = 64
    LL = 72
    for q in range(4):
        A.i(f"v_mov_b32 {v(ONES + q)}, 0x3f803f80")
    for u in range(4):
        A.i(f"v_mfma_f32_16x16x32_bf16 {v(LL, 4)}, {v(ONES, 4)}, {v(P + 4 * u, 4)}, {'0' if u == 0 else v(LL, 4)}")
    A.i(f"v_mul_f32 {v(HD)}, 0x3c000000, {v(HD)}")
    A(f"""
    s_lshl4_add_u32 {s(sB)}, {s(sX)}, {s(sJJ)}
    s_lshl2_add_u32 {s(sB)}, {s(sB)}, {s(sW)}
    s_lshl_b32 {s(sB)}, {s(sB)}, 8
    s_add_u32 {s(sB)}, {s(sB)}, {WS_HDR}
    v_lshl_add_u32 {v(vA1)}, {v(vC16)}, 4, {s(sB)}
    v_mov_b32 {v(HD + 1)}, {v(LL)}
    v_mov_b32 {v(HD + 2)}, {s(sT)}
    v_mov_b32 {v(HD + 3)}, {s(sT)}
    """)
    vHA, vDA, vR1, vW2, vR2, vCP = 20, 21, 22, 23, 24, 25
    A(f"""
    v_lshrrev_b32 {v(vT)}, 2, {v(vC16)}
    v_and_b32 {v(vT + 4)}, 3, {v(vL)}
    v_lshl_add_u32 {v(vT + 1)}, {s(sW)}, 2, {v(vT + 4)}
    v_lshl_add_u32 {v(vT + 1)}, {v(vT + 1)}, 2, {v(vG)}
    s_lshr_b32 {s(sB)}, {s(sH)}, 4
    s_and_b32 {s(sC)}, {s(sJJ)}, 3
    s_lshl2_add_u32 {s(sB)}, {s(sB)}, {s(sC)}
    s_lshl_b32 {s(sB)}, {s(sB)}, 8
    s_and_b32 {s(sD)}, {s(sH)}, 15
    s_lshl4_add_u32 {s(sB)}, {s(sD)}, {s(sB)}
    s_add_u32 {s(sB)}, {s(sB)}, {WS_HDR}
    v_lshl_add_u32 {v(vHA)}, {v(vT + 1)}, 11, {s(sB)}
    s_lshl2_add_u32 {s(sC)}, {s(sH)}, {s(sC)}
    s_lshl2_add_u32 {s(sB)}, {s(sC)}, {s(sW)}
    s_lshl_b32 {s(sB)}, {s(sB)}, 12
    s_add_u32 {s(sB)}, {s(sB)}, {WS_PART}
    v_lshl_add_u32 {v(vDA)}, {v(vL)}, 4, {s(sB)}
    v_and_b32 {v(vT + 1)}, 1, {v(vL)}
    v_lshl_add_u32 {v(vT + 1)}, {v(vT + 1)}, 4, {v(vG)}
    v_lshlrev_b32 {v(vT + 1)}, 4, {v(vT + 1)}
    v_lshl_add_u32 {v(vT + 1)}, {v(vT)}, 10, {v(vT + 1)}
    s_lshl_b32 {s(sB)}, {s(sW)}, 6
    s_add_u32 {s(sB)}, {s(sB)}, {L_RED2}
    v_add_u32 {v(vR1)}, {s(sB)}, {v(vT + 1)}
    v_add_u32 {v(vW2)}, {L_RED2}, {v(vRW)}
    s_and_b32 {s(sB)}, {s(sW)}, 1
    s_lshl_b32 {s(sB)}, {s(sB)}, 4
    v_add_u32 {v(vT + 1)}, {s(sB)}, {v(vO)}
    s_lshl_b32 {s(sC)}, {s(sC)}, 9
    s_add_u32 {s(sC)}, {s(sC)}, {WS_CP}
    v_lshl_add_u32 {v(vCP)}, {v(vT + 1)}, 4, {s(sC)}
    v_and_b32 {v(vT + 4)}, 1, {v(vT + 1)}
    v_lshrrev_b32 {v(vT + 1)}, 1, {v(vT + 1)}
    v_lshl_add_u32 {v(vT + 1)}, {v(vT + 4)}, 4, {v(vT + 1)}
    v_lshlrev_b32 {v(vT + 1)}, 4, {v(vT + 1)}
    v_lshl_add_u32 {v(vT + 1)}, {v(vT)}, 10, {v(vT + 1)}
    v_add_u32 {v(vR2)}, {L_RED2 + 4096}, {v(vT + 1)}
    s_waitcnt vmcnt(8)
    s_mov_b64 exec, 0xffff
    global_store_dwordx4 {v(vA1)}, {v(HD, 4)}, {s(pWS, 2)} sc1
    s_mov_b64 exec, -1
    """)
    stamp(11)
    H = 32

    def ld_h():
        A.i(f"global_load_dwordx3 {v(H, 3)}, {v(vHA)}, {s(pWS, 2)} sc1")
    setexec(0x000F000F, 0x000F000F)
    poll("hdr", ld_h, None, None, full_tag_reg=H + 2)
    execall()
    stamp(12)
    PD = 80
    for t in range(4):
        A.i(f"global_load_dwordx4 {v(PD + 4 * t, 4)}, {v(vDA)}, {s(pWS, 2)} offset:{1024 * t} sc1")
    A(f"""
    s_lshl_b32 {s(sB)}, {s(sW)}, 9
    s_add_u32 {s(sB)}, {s(sB)}, {L_RED2 + 8192}
    v_lshl_add_u32 {v(36)}, {v(vL)}, 3, {s(sB)}
    ds_write_b64 {v(36)}, {v(H, 2)}
    v_add_u32 {v(36)}, {s(sW)}, {v(vT)}
    v_and_b32 {v(36)}, 3, {v(36)}
    v_and_b32 {v(37)}, 0x33, {v(vL)}
    v_lshlrev_b32 {v(37)}, 3, {v(37)}
    v_lshl_add_u32 {v(36)}, {v(36)}, 9, {v(37)}
    v_add_u32 {v(36)}, {L_RED2 + 8192}, {v(36)}
    s_waitcnt lgkmcnt(0)
    s_barrier
    ds_read_b64 {v(H, 2)}, {v(36)}
    s_waitcnt lgkmcnt(0)
    v_mov_b32 {v(36)}, {v(H)}
    """)
    row_allreduce("v_max_f32", [36])
    cross_rows("v_max_f32", [36], 37)
    A(f"""
    v_sub_f32 {v(36)}, {v(H)}, {v(36)}
    v_exp_f32 {v(36)}, {v(36)}
    v_mul_f32 {v(38)}, {v(36)}, {v(H + 1)}
    v_cvt_pk_bf16_f32 {v(36)}, {v(36)}, {v(36)}
    """)
    D = 40
    AT = 48
    ms = [sel_mfma(D, 36, f"row_newbcast:{t}", v(PD + 4 * t, 4), AT + 4 * t, t == 0) for t in range(4)]
    for t in range(4):
        A.i(f"s_waitcnt vmcnt({3 - t})")
        A.i(ms[t])
    R0 = 44
    row_allreduce("v_add_f32", [38])
    A.i(f"ds_write_b128 {v(vW2)}, {v(D, 4)}")
    cross_rows("v_add_f32", [38], 37)
    A(f"""
    s_waitcnt lgkmcnt(0)
    s_barrier
    ds_read_b128 {v(R0, 4)}, {v(vR1)}
    v_rcp_f32 {v(38)}, {v(38)}
    s_waitcnt lgkmcnt(0)
    """)
    for ror in (4, 8):
        for r in range(4):
            A.i(f"v_add_f32_dpp {v(R0 + r)}, {v(R0 + r)}, {v(R0 + r)} row_ror:{ror} {DPPALL}")
    for r in range(4):
        A.i(f"v_mul_f32 {v(R0 + r)}, {v(R0 + r)}, {v(38)}")
    for r in range(4):
        A.i(f"v_cvt_pk_bf16_f32 {v(R0 + r)}, {v(R0 + r)}, {v(R0 + r)}")
    sel_chain(D, [(R0 + (u & 3), f"quad_perm:[{u >> 2},{u >> 2},{u >> 2},{u >> 2}]", v(WUV + 4 * u, 4)) for u in range(8)], AT)
    A(f"""
    ds_write_b128 {v(vW2)}, {v(D, 4)} offset:4096
    s_waitcnt lgkmcnt(0)
    s_barrier
    ds_read_b128 {v(R0, 4)}, {v(vR2)}
    s_lshr_b32 {s(sB)}, {s(sW)}, 1
    s_lshl_b32 {s(sB)}, {s(sB)}, 5
    s_mov_b32 {s(sC)}, 0x000f000f
    s_mov_b32 {s(sD)}, 0
    s_lshl_b64 {s(sC, 2)}, {s(sC, 2)}, {s(sB)}
    s_waitcnt lgkmcnt(0)
    """)
    for ror in (4, 8):
        for r in range(4):
            A.i(f"v_add_f32_dpp {v(R0 + r)}, {v(R0 + r)}, {v(R0 + r)} row_ror:{ror} {DPPALL}")
    tag4(R0, R0)
    A(f"""
    s_mov_b64 exec, {s(sC, 2)}
    """)
    if local:
        A.i(f"global_store_dwordx4 {v(vCP)}, {v(R0, 4)}, {s(sLB, 2)}")
    A.i(f"global_store_dwordx4 {v(vCP)}, {v(R0, 4)}, {s(pWS, 2)} sc1")
    stamp(13)
    finish_stamps()
    A.label("L_end")
    A.i("s_endpgm")
    A.label("L_code_end")

    head = open("sequential_preLN__compressed_kv_cla__moe_arch_mod__decode.s.ref").read().split("\n")
    hdr = [ln for ln in head if ln.startswith(";") and "@launch" not in ln and "Override launch" not in ln and "grid=ceil" not in ln]
    out = "\n".join(hdr) + "\n"
    out += f"; @launch grid=(256,1,1) block=(256,1,1) lds={L_TOTAL}\n"
    out += f""".amdgcn_target "amdgcn-amd-amdhsa--gfx950"
.text
.globl {NAME}
.p2align 8
.type {NAME},@function
"""
    out += A.finish()
    out += f""".section .rodata,"a"
.p2align 6
.amdhsa_kernel {NAME}
  .amdhsa_next_free_vgpr 512
  .amdhsa_next_free_sgpr 102
  .amdhsa_accum_offset 256
  .amdhsa_group_segment_fixed_size 0
  .amdhsa_kernarg_size 112
  .amdhsa_user_sgpr_count 2
  .amdhsa_user_sgpr_kernarg_segment_ptr 1
  .amdhsa_system_sgpr_workgroup_id_x 1
.end_amdhsa_kernel
"""
    return out


if __name__ == "__main__":
    import json
    variants = {"k3": {}}
    if len(sys.argv) > 1:
        variants = json.loads(sys.argv[1])
    for nm, o in variants.items():
        open(f"work/{nm}.s", "w").write(build(False, o))
        open(f"work/{nm}_st.s", "w").write(build(True, o))
```
